```python
import torch

def _softmax(x, axis=-1):
    return torch.softmax(x, dim=axis)
def _gelu(x):
    return torch.nn.functional.gelu(x, approximate="tanh")
def _silu(x):
    return torch.nn.functional.silu(x)
def _sigmoid(x):
    return torch.sigmoid(x)
def _layernorm(x, axis=-1, eps=1e-5):
    m = x.mean(dim=axis, keepdim=True)
    v = x.var(dim=axis, keepdim=True, unbiased=False)
    return (x - m) / torch.sqrt(v + eps)
def _scatter_add(tgt, idx, src, axis=0):
    return tgt.clone().index_add_(axis, idx, src)
def _segment_sum(src, seg, n):
    out = torch.zeros((n,) + src.shape[1:], dtype=src.dtype)
    return out.index_add_(0, seg, src)
def _pad(x, pw):
    flat = tuple(v for pair in reversed(pw) for v in pair)
    return torch.nn.functional.pad(x, flat)

kernel_name = 'standalone__gqa_softmax__near_ridge'

def setup_inputs():

    _w = (lambda a: (lambda t: t.to(torch.bfloat16) if t.is_floating_point() else t)(torch.as_tensor(a)))
    B, Hq, Hkv, Sq, Sk, D = 32, 32, 8, 384, 384, 128
    return {
        "q": _w((lambda *s: torch.randn(*s, dtype=torch.bfloat16) * 0.8)(B, Hq, Sq, D)),
        "k": _w((lambda *s: torch.randn(*s, dtype=torch.bfloat16) * 0.8)(B, Hkv, Sk, D)),
        "v": _w((lambda *s: torch.randn(*s, dtype=torch.bfloat16) * 0.05)(B, Hkv, Sk, D)),
    }

def reference(q, k, v):
    B, Hq, Sq, D = q.shape
    Hkv = k.shape[1]
    rep = Hq // Hkv
    k = (lambda x, n, axis: torch.repeat_interleave(x, n, dim=axis))(k, rep, axis=1)
    v = (lambda x, n, axis: torch.repeat_interleave(x, n, dim=axis))(v, rep, axis=1)
    scale = D ** -0.5
    scores = torch.einsum("bhqd,bhkd->bhqk", q, k) * scale
    p = _softmax(scores, axis=-1)
    return torch.einsum("bhqk,bhkd->bhqd", p, v)
```

```python
import re, heapq

def R(f, lo, n=1):
    return [f"{f}{i}" for i in range(lo, lo+n)]
def rng(f, lo, n):
    return f"{f}{lo}" if n == 1 else f"{f}[{lo}:{lo+n-1}]"

class Op:
    __slots__ = ("id","text","kind","rd","wr","rc","cost","preds","succs","dl","hd","pos","midx","np","earliest","tag","lat")
    def __init__(s, text, kind, rd=(), wr=(), rc=(), cost=None, tag=None, earliest=None, lat=None):
        s.text=text; s.kind=kind; s.rd=list(rd); s.wr=list(wr); s.rc=list(rc)
        s.cost = cost if cost is not None else {"M":8,"V":4,"P":4,"E":8,"D":4,"W":4,"L":8,"T":8,"S":4,"X":4,"B":4}[kind]
        s.preds=[]; s.succs=[]; s.pos=None; s.midx=None; s.tag=tag; s.earliest=earliest; s.lat=lat
VALU = ("V","P","E")
ASYNC_DS=("D",); ASYNC_VM=("L",)

def req_ws(p, c, dep, reg):
    if p.kind=="M":
        if dep in ("RAW","WAW"):
            if c.kind=="M":
                if dep=="RAW":
                    if reg in c.rc and reg not in c.rd:
                        return 0 if c.rc==p.wr else 6
                    return 8
                return 0
            return 8
        if dep=="WAR":
            if reg in p.rc and c.kind!="M": return 3
            return 0
    if p.kind in VALU:
        if dep=="RAW":
            if c.kind=="M": return 2
            if c.kind=="P": return 2
            if p.kind=="E" and c.kind in ("V","P"): return 1
            if reg.startswith("s") or reg=="vcc":
                if c.kind in ("L","T","X"): return 5
                if c.kind in VALU: return 2
                return 1
        return 0
    if p.kind in ("T","W") and dep=="WAR":
        return 2
    if p.kind=="S" and dep=="RAW" and reg=="m0": return 1
    return 0

def build_deps(prog):
    lastw={}; readers={}
    for i,o in enumerate(prog):
        o.id=i; o.preds=[]; o.succs=[]
    for o in prog:
        deps={}
        def add(p,dep,reg):
            if p is o: return
            deps.setdefault(p.id,[p,[]])[1].append((dep,reg))
        for r in o.rd+o.rc:
            if r in lastw: add(lastw[r],"RAW",r)
        for r in o.wr:
            if r in lastw: add(lastw[r],"WAW",r)
            for q in readers.get(r,()): add(q,"WAR",r)
        for r in o.rd+o.rc: readers.setdefault(r,[]).append(o)
        for r in o.wr:
            lastw[r]=o; readers[r]=[]
        for p,lst in deps.values():
            ws=max(req_ws(p,o,d,r) for d,r in lst)
            raw=any(d=="RAW" for d,_ in lst)
            o.preds.append((p,ws,raw)); p.succs.append((o,ws,raw))

RANK={"S":0,"D":1,"W":1,"L":1,"T":1,"X":1,"V":2,"P":2,"E":2}
DS_LAT=9
VM_LAT=150
CAP=8

def schedule(prog, verbose=True):
    build_deps(prog)
    ms=[o for o in prog if o.kind=="M"]
    for i,m in enumerate(ms): m.midx=i
    N=len(ms); INF=10**9
    def soft(p,c,ws,raw):
        if raw and p.kind=="D": return DS_LAT
        if raw and p.kind=="L": return p.lat if p.lat is not None else VM_LAT
        if c.kind=="M": return 2 if ws else 0
        if RANK[p.kind]>RANK[c.kind]: return 1
        return 1 if (ws or p.kind=="E" or c.kind=="E") else 0
    for o in reversed(prog):
        if o.kind=="M": continue
        dl=INF; hd=INF
        for c,ws,raw in o.succs:
            if c.kind=="M":
                dl=min(dl,c.midx-1-soft(o,c,ws,raw)); hd=min(hd,c.midx-1)
            else:
                dl=min(dl,c.dl-soft(o,c,ws,raw)); hd=min(hd,c.hd)
        o.dl=dl; o.hd=hd
    for o in prog: o.np=len(o.preds); o.pos=None
    ready=[o for o in prog if o.np==0 and o.kind!="M"]
    out=[]
    gapof={}
    cyc=0; over=0; stats={}
    def release(o):
        for c,_,_ in o.succs:
            c.np-=1
            if c.np==0 and c.kind!="M": ready.append(c)
    byhd={}
    for o in prog:
        if o.kind!="M": byhd.setdefault(o.hd,[]).append(o)
    for g in range(-1,N):
        if g>=0:
            m=ms[g]; assert m.np==0, (m.text,[p.text for p,_,_ in m.preds if p.pos is None])
            m.pos=len(out); out.append(m); gapof[m.id]=g; release(m)
        cur=[]
        used=0; sfree=True
        base=len(out)
        def place(o):
            nonlocal used,sfree
            ready.remove(o); cur.append(o); gapof[o.id]=g; o.pos=-2
            if o.kind=="S" and sfree: sfree=False
            else: used+=o.cost
            release(o)
        def ok(o):
            if o.earliest is not None and g<o.earliest: return False
            for p,ws,raw in o.preds:
                pg=gapof[p.id]
                if p.kind=="M":
                    if ws and (base-p.pos-1+sum(1 for x in cur if RANK[x.kind]<=RANK[o.kind]))<ws: return False
                else:
                    if pg==g:
                        if RANK[p.kind]>RANK[o.kind] or ws or (raw and p.kind in "DL"): return False
                    else:
                        if raw and p.kind=="D" and g-pg<DS_LAT: return False
                        if raw and p.kind=="L" and g-pg<(p.lat if p.lat is not None else VM_LAT): return False
                        if ws and (base-p.pos-1)<ws: return False
            return True
        last = (g==N-1)
        while True:
            cands=[o for o in ready if ((o.kind=="S" and sfree) or used+o.cost<=CAP) and ok(o)]
            if g<0: cands=[o for o in cands if o.hd<=DS_LAT+8]
            if not cands: break
            o=min(cands,key=lambda x:(x.dl,x.id)); place(o)
        cur.sort(key=lambda x:RANK[x.kind])
        forced=[]
        while True:
            f=[o for o in ready if o.hd<=g or last]
            if not f: break
            o=min(f,key=lambda x:x.id)
            ready.remove(o); forced.append(o); gapof[o.id]=g; used+=o.cost; release(o)
        for o in cur+forced:
            o.pos=len(out); out.append(o)
        if g>=0:
            c=max(16,8+used); cyc+=c
            if c>16 and not last:
                over+=c-16
                for o in forced: stats[o.tag]=stats.get(o.tag,0)+o.cost
    assert all(o.pos is not None for o in prog)
    if verbose: print(f"sched: {N} mfma, est cycles {cyc}, overflow {over}, forced by tag {stats}")
    return out

def finalize(lin, after_mfma_waits=True):
    ins={}
    dsq=[]; vmq=[]
    ds_done=0; vm_done=0
    pend={}
    lastm=-1
    for i,o in enumerate(lin):
        need_ds=-1; need_vm=-1
        for r in o.rd+o.rc+o.wr:
            if r in pend:
                k,s=pend[r]
                if k=="ds" and s>=ds_done: need_ds=max(need_ds,s)
                if k=="vm" and s>=vm_done: need_vm=max(need_vm,s)
        for k,need,q in (("ds",need_ds,dsq),("vm",need_vm,vmq)):
            if need<0: continue
            p=i
            if after_mfma_waits and lastm>=0 and q[need]<lastm: p=lastm+1
            n=sum(1 for x in q[need+1:] if x<p)
            n=min(n,15 if k=="ds" else 63)
            w=ins.setdefault(p,[None,None]); j=1 if k=="ds" else 0
            w[j]=n if w[j] is None else min(w[j],n)
            if k=="ds": ds_done=need+1
            else: vm_done=need+1
        if o.kind=="B":
            if "lgkmcnt(0)" in o.text: ds_done=len(dsq)
            if "vmcnt(0)" in o.text: vm_done=len(vmq)
        if o.kind in ("D","W"):
            dsq.append(i)
            if o.kind=="D":
                for r in o.wr: pend[r]=("ds",len(dsq)-1)
        if o.kind in ("L","T","X"):
            vmq.append(i)
            if o.kind in ("L","X"):
                for r in o.wr: pend[r]=("vm",len(vmq)-1)
        if o.kind=="M": lastm=i
    lin2=[]
    for i,o in enumerate(lin):
        if i in ins:
            vm,lg=ins[i]
            t="s_waitcnt"+(f" vmcnt({vm})" if vm is not None else "")+(f" lgkmcnt({lg})" if lg is not None else "")
            lin2.append(Op(t,"S"))
        lin2.append(o)
    out=[]; cnt=0
    lastw={}; readers={}
    nnop=0
    for o in lin2:
        need=0
        for r in o.rd+o.rc:
            if r in lastw:
                p,pp=lastw[r]; need=max(need,req_ws(p,o,"RAW",r)-(cnt-pp-1))
        for r in o.wr:
            if r in lastw:
                p,pp=lastw[r]; need=max(need,req_ws(p,o,"WAW",r)-(cnt-pp-1))
            for p,pp in readers.get(r,()):
                need=max(need,req_ws(p,o,"WAR",r)-(cnt-pp-1))
        if need>0:
            out.append(f"s_nop {need-1}"); cnt+=need; nnop+=1
        out.append(o.text)
        for r in o.rd+o.rc:
            l=readers.setdefault(r,[]); l.append((o,cnt))
            if len(l)>4: del l[0]
        for r in o.wr:
            lastw[r]=(o,cnt); readers[r]=[]
        cnt+=1
    return out,nnop
```

```python
import sys, struct, math
from sched import *
NAME="standalone__gqa_softmax__near_ridge_kernel"
def f2u(x): return struct.unpack("<I",struct.pack("<f",x))[0]
CSCALE = f2u(math.log2(math.e)/math.sqrt(128.0))
THRESH = f2u(2.0**60)

vO=0; vL=128; vC=144; vS=160; vP=176; vST=184; vLS=216; vQL=220; vONE=236; vT=240
vA0=244; vA1=245; vA2=246; vQO=247; vM0=248; vM1=249
aQ=0; aKR=64; aKF=192; aVF=224
sQ,sK,sV,sO = 8,12,16,20
sW=24; sQB=25; sKV=26; sC=27; sTH=28; sFL=29; sPL=30; sPH=31; sQo=32; sOo=33; sTmp=34
NRES=4
MF="v_mfma_f32_16x16x32_bf16"
LDNT=" nt"; STNT=" nt"

def lds_addr(off):
    b=off>>16
    return (vA0,vA1,vA2)[b], off&0xffff
def k_lds(s,j): return 98304+(s-NRES)*8192+j*1024
def v_lds(s,b): return s*8192+b*1024

def mfma(d,a,b,c,tag=None):
    ct = "0" if c is None else rng("v",c,4)
    return Op(f"{MF} {rng('v',d,4)}, {rng(a[0],a[1],4)}, {rng(b[0],b[1],4)}, {ct}","M",
              rd=R(a[0],a[1],4)+R(b[0],b[1],4), wr=R("v",d,4), rc=[] if c is None else R("v",c,4), tag=tag)
def dsread(f,base,off,tag,extra=()):
    a,o=lds_addr(off)
    return Op(f"ds_read_b128 {rng(f,base,4)}, v{a} offset:{o}","D",rd=[f"v{a}"]+list(extra),wr=R(f,base,4),tag=tag)
def valu(text,rd,wr,kind="V",tag=None): return Op(text,kind,rd=rd,wr=wr,tag=tag)

def kfrag(s,j):
    return ("a", aKR+32*s+4*j) if s<NRES else ("a", aKF+4*j)

def qloads(idx_expr_op, dstf, dst, tag="ql", lat=None):
    ops=[idx_expr_op]
    for ks in range(4):
        ops.append(Op(f"buffer_load_dwordx4 {rng(dstf,dst+4*ks,4)}, v{vQO}, s[{sQ}:{sQ+3}], s{sQo} offen offset:{64*ks}{LDNT}","L",
                      rd=[f"v{vQO}",f"s{sQo}"],wr=R(dstf,dst+4*ks,4),tag=tag,lat=lat))
    return ops

def max_ops(c, tag="max"):
    a,b=vM0,vM1
    return [
      valu(f"v_max3_f32 v{a}, v{c}, v{c+1}, v{c+2}",R("v",c,3),[f"v{a}"],tag=tag),
      valu(f"v_max_f32 v{a}, v{a}, v{c+3}",[f"v{a}",f"v{c+3}"],[f"v{a}"],tag=tag),
      valu(f"v_mov_b32 v{b}, v{a}",[f"v{a}"],[f"v{b}"],tag=tag),
      valu(f"v_permlane16_swap_b32 v{a}, v{b}",[f"v{a}",f"v{b}"],[f"v{a}",f"v{b}"],"P",tag=tag),
      valu(f"v_max_f32 v{a}, v{a}, v{b}",[f"v{a}",f"v{b}"],[f"v{a}"],tag=tag),
      valu(f"v_mov_b32 v{b}, v{a}",[f"v{a}"],[f"v{b}"],tag=tag),
      valu(f"v_permlane32_swap_b32 v{a}, v{b}",[f"v{a}",f"v{b}"],[f"v{a}",f"v{b}"],"P",tag=tag),
      valu(f"v_min_f32 v{a}, -v{a}, -v{b}",[f"v{a}",f"v{b}"],[f"v{a}"],tag=tag),
    ]

def epilogue(src, lsrc, soff_op, flagbit, tag="epi"):
    ops=[]
    if flagbit is not None:
        ops+=[valu(f"v_max3_f32 v{vT}, v{lsrc}, v{lsrc+1}, v{lsrc+2}",R("v",lsrc,3),[f"v{vT}"],tag=tag),
              valu(f"v_max_f32 v{vT}, v{vT}, v{lsrc+3}",[f"v{vT}",f"v{lsrc+3}"],[f"v{vT}"],tag=tag),
              valu(f"v_cmp_lt_f32 vcc, s{sTH}, v{vT}",[f"v{vT}",f"s{sTH}"],["vcc"],tag=tag),
              Op("s_cmp_lg_u64 vcc, 0","S",rd=["vcc"],wr=["scc"],tag=tag),
              Op(f"s_cselect_b32 s{sTmp}, {1<<flagbit}, 0","S",rd=["scc"],wr=[f"s{sTmp}"],tag=tag),
              Op(f"s_or_b32 s{sFL}, s{sFL}, s{sTmp}","S",rd=[f"s{sFL}",f"s{sTmp}"],wr=[f"s{sFL}","scc"],tag=tag)]
    for r in range(4):
        ops.append(valu(f"v_rcp_f32 v{lsrc+r}, v{lsrc+r}",[f"v{lsrc+r}"],[f"v{lsrc+r}"],"E",tag=tag))
    ops.append(soff_op)
    for r in range(4):
        for j in range(4):
            x,y=src+8*j+r, src+8*j+4+r
            ops.append(valu(f"v_mul_f32 v{x}, v{x}, v{lsrc+r}",[f"v{x}",f"v{lsrc+r}"],[f"v{x}"],tag=tag))
            ops.append(valu(f"v_mul_f32 v{y}, v{y}, v{lsrc+r}",[f"v{y}",f"v{lsrc+r}"],[f"v{y}"],tag=tag))
            ops.append(valu(f"v_cvt_pk_bf16_f32 v{vT+j}, v{x}, v{y}",[f"v{x}",f"v{y}"],[f"v{vT+j}"],tag=tag))
        ops.append(Op(f"buffer_store_dwordx4 {rng('v',vT,4)}, v{vA0}, s[{sO}:{sO+3}], s{sOo} offen offset:{1024*r}{STNT}","T",
                      rd=R("v",vT,4)+[f"v{vA0}",f"s{sOo}"],tag=tag))
    return ops

def sm_ops(sb,pb,tag="sm"):
    ops=[]
    for j in range(4):
        for e in range(2):
            r=sb+2*j+e
            ops.append(valu(f"v_exp_f32 v{r}, v{r}",[f"v{r}"],[f"v{r}"],"E",tag=tag))
        ops.append(valu(f"v_cvt_pk_bf16_f32 v{pb+j}, v{sb+2*j}, v{sb+2*j+1}",R("v",sb+2*j,2),[f"v{pb+j}"],tag=tag))
    return ops

def soff(reg, idx): return Op(f"s_add_u32 s{reg}, s{sQB}, {idx*4096}","S",rd=[f"s{sQB}"],wr=[f"s{reg}","scc"],tag="soff")

def main_prog():
    OFF=[0,3,6,9]
    units=[]
    for tau in range(12*6+OFF[3]):
        for t in range(4):
            if tau<12: p,k=0,tau
            else:
                x=tau-OFF[t]
                if x<12 or x>=72: continue
                p,k=x//12,x%12
            units.append(dict(t=t,p=p,tau=tau,s=tau%12,first=(k==0),last=(k==11)))
    nU=len(units)
    for i,u in enumerate(units):
        u["i"]=i; u["newstep"]= (i==0 or units[i-1]["tau"]!=u["tau"])
    land={}
    for p in range(1,6):
        for t in range(4): land[(t,p)]=("v",vQL)
    land[(1,1)]=("v",vST); land[(2,1)]=None; land[(3,1)]=None
    ql_order=[(t,p) for p in range(1,6) for t in range(4) if land[(t,p)]==("v",vQL)]
    prog=[]
    def emit_qload(t,p):
        l=land[(t,p)]
        if l is None: prog.extend(qloads(soff(sQo,4*p+t),"a",aQ+16*t))
        else: prog.extend(qloads(soff(sQo,4*p+t),l[0],l[1]))
    emit_qload(0,1); emit_qload(1,1)
    def chain(u,kb,d,c):
        for ks in range(4):
            prog.append(mfma(d,kfrag(u["s"],4*kb+ks),("a",aQ+16*u["t"]+4*ks), c if ks==0 else d, tag="qk"))
    def kloads(u):
        if u["newstep"] and u["s"]>=NRES and not u.get("kl"):
            u["kl"]=True
            for j in range(8): prog.append(dsread("a",aKF+4*j,k_lds(u["s"],j),"kf"))
    def hoist(u):
        c=vC+4*u["t"]; sb=vS+8*(u["i"]%2)
        chain(u,0,c,None)
        u["post"]=max_ops(c)
        for r in range(4): u["post"].append(valu(f"v_add_f32 v{sb+r}, v{c+r}, v{vM0}",[f"v{c+r}",f"v{vM0}"],[f"v{sb+r}"],tag="max"))
        for r in range(4): u["post"].append(valu(f"v_mov_b32 v{c+r}, v{vM0}",[f"v{vM0}"],[f"v{c+r}"],tag="max"))
        u["hoisted"]=True
    for t in range(4): hoist(units[t])
    for i in range(-1,nU):
        nx=units[i+1] if i+1<nU else None
        n2=units[i+2] if i+2<nU else None
        if nx: kloads(nx)
        if n2 and n2["first"] and not n2.get("hoisted"):
            assert n2["s"]<NRES or n2["tau"]==nx["tau"], n2
            hoist(n2)
        if nx:
            c=vC+4*nx["t"]; sb=vS+8*(nx["i"]%2)
            if nx["first"]:
                prog.extend(nx["post"])
                chain(nx,1,sb+4,c)
            else:
                chain(nx,0,sb,c); chain(nx,1,sb+4,c)
            if nx["last"] and nx["p"]<5:
                t,p=nx["t"],nx["p"]+1; l=land[(t,p)]
                if l is None: emit_qload(t,p)
                else:
                    for r in range(16):
                        prog.append(valu(f"v_accvgpr_write_b32 a{aQ+16*t+r}, v{l[1]+r}",[f"v{l[1]+r}"],[f"a{aQ+16*t+r}"],tag="qcp"))
                    if l==("v",vQL):
                        k=ql_order.index((t,p))
                        if k+1<len(ql_order): emit_qload(*ql_order[k+1])
        if i>=0:
            u=units[i]; t=u["t"]; pb=vP+4*(i%2)
            if u["newstep"]:
                for b in range(8): prog.append(dsread("a",aVF+4*b,v_lds(u["s"],b),"vf"))
            stage = u["last"] and 1<=u["p"]<5
            lo=vL+4*t
            prog.append(mfma(vLS if stage else lo,("v",pb),("v",vONE),None if u["first"] else lo,tag="l"))
            for b in range(8):
                o=vO+32*t+4*b
                prog.append(mfma(vST+4*b if stage else o,("v",pb),("a",aVF+4*b),None if u["first"] else o,tag="pv"))
            if u["last"]:
                idx=4*u["p"]+t
                prog.extend(epilogue(vST if stage else vO+32*t, vLS if stage else lo, soff(sOo,idx), idx))
        if nx:
            prog.extend(sm_ops(vS+8*(nx["i"]%2), vP+4*(nx["i"]%2)))
    return prog

def S(t,rd=(),wr=()): return Op(t,"S",rd=rd,wr=wr)
def Bar(t): return Op(t,"B")

def setup_text():
    return f"""
 s_cmp_ge_u32 s2, 256
 s_cbranch_scc1 L_end
 s_load_dwordx4 s[36:39], s[0:1], 0
 s_load_dwordx4 s[40:43], s[0:1], 16
 s_getpc_b64 s[44:45]
 v_lshlrev_b32 v1, 7, v0
 global_load_dword v250, v1, s[44:45]
 v_add_u32 v1, 0x8000, v1
 global_load_dword v251, v1, s[44:45]
 v_add_u32 v1, 0x8000, v1
 global_load_dword v252, v1, s[44:45]
 v_and_b32 v1, 63, v0
 v_lshrrev_b32 v2, 6, v0
 v_lshlrev_b32 v{vA0}, 4, v1
 v_readfirstlane_b32 s{sW}, v2
 v_add_u32 v{vA1}, 0x10000, v{vA0}
 v_add_u32 v{vA2}, 0x20000, v{vA0}
 v_and_b32 v3, 15, v1
 v_lshrrev_b32 v4, 4, v1
 v_and_b32 v5, 3, v3
 v_lshrrev_b32 v6, 2, v3
 v_lshl_add_u32 v5, v5, 2, v6
 v_lshlrev_b32 v5, 8, v5
 v_lshl_add_u32 v{vQO}, v4, 4, v5
 v_lshlrev_b32 v5, 8, v3
 v_lshl_add_u32 v253, v4, 4, v5
 v_lshlrev_b32 v5, 10, v4
 v_lshl_add_u32 v254, v3, 4, v5
 v_lshlrev_b32 v5, 13, v2
 v_add_u32 v255, v5, v{vA0}
 v_mov_b32 v{vONE}, 0x3f803f80
 v_mov_b32 v{vONE+1}, 0x3f803f80
 v_mov_b32 v{vONE+2}, 0x3f803f80
 v_mov_b32 v{vONE+3}, 0x3f803f80
 s_mov_b32 s{sC}, {CSCALE:#x}
 s_mov_b32 s{sTH}, {THRESH:#x}
 s_mov_b32 s{sFL}, 0
 s_mov_b32 s{sPL}, 0x05040100
 s_mov_b32 s{sPH}, 0x07060302
 s_mul_i32 s{sQB}, s2, 393216
 s_mul_i32 s{sKV}, s{sW}, 98304
 s_add_u32 s{sQB}, s{sQB}, s{sKV}
 s_mul_i32 s{sKV}, s2, 98304
 s_lshl_b32 s{sTmp}, s{sW}, 13
 s_add_u32 s{sKV}, s{sKV}, s{sTmp}
 s_waitcnt lgkmcnt(0)
 s_mov_b32 s{sQ}, s36
 s_mov_b32 s{sQ+1}, s37
 s_mov_b32 s{sQ+2}, 100663296
 s_mov_b32 s{sQ+3}, 0x20000
 s_mov_b32 s{sK}, s38
 s_mov_b32 s{sK+1}, s39
 s_mov_b32 s{sK+2}, 25165824
 s_mov_b32 s{sK+3}, 0x20000
 s_mov_b32 s{sV}, s40
 s_mov_b32 s{sV+1}, s41
 s_mov_b32 s{sV+2}, 25165824
 s_mov_b32 s{sV+3}, 0x20000
 s_mov_b32 s{sO}, s42
 s_mov_b32 s{sO+1}, s43
 s_mov_b32 s{sO+2}, 100663296
 s_mov_b32 s{sO+3}, 0x20000
"""

def staging_v1():
    ops=[]
    vW,vW1,vW2=255,192,193
    ops.append(valu(f"v_add_u32 v{vW1}, 0x10000, v{vW}",[f"v{vW}"],[f"v{vW1}"]))
    ops.append(valu(f"v_add_u32 v{vW2}, 0x20000, v{vW}",[f"v{vW}"],[f"v{vW2}"]))
    so=[46+i for i in range(6)]
    for g in range(3):
        for h in range(2):
            ops.append(S(f"s_add_u32 s{so[2*g+h]}, s{sKV}, {g*32768+h*4096}",wr=[f"s{so[2*g+h]}"]))
    def kload(g):
        for j in range(8):
            kb,ks=j//4,j%4; d=32*g+4*j
            ops.append(Op(f"buffer_load_dwordx4 {rng('v',d,4)}, v253, s[{sK}:{sK+3}], s{so[2*g+kb]} offen offset:{64*ks}{LDNT}","L",wr=R("v",d,4)))
    def vload(g):
        for i in range(8):
            d=96+32*g+4*i
            ops.append(Op(f"buffer_load_dwordx4 {rng('v',d,4)}, v254, s[{sV}:{sV+3}], s{so[2*g+i//4]} offen offset:{256*(i%4)}{LDNT}","L",wr=R("v",d,4)))
    kload(0); kload(1); kload(2)
    vload(0); vload(1)
    for t in range(4):
        ops.extend(qloads(soff(sQo,t),"a",aQ+16*t))
    def kproc(g):
        base,off=((vW1,0),(vW1,32768),(vW2,0))[g]
        for j in range(8):
            d=32*g+4*j
            for e in range(4):
                x=d+e; t0=194+2*(e%2); t1=t0+1
                ops.append(valu(f"v_lshlrev_b32 v{t0}, 16, v{x}",[f"v{x}"],[f"v{t0}"]))
                ops.append(valu(f"v_and_b32 v{t1}, 0xffff0000, v{x}",[f"v{x}"],[f"v{t1}"]))
                ops.append(valu(f"v_mul_f32 v{t0}, s{sC}, v{t0}",[f"v{t0}"],[f"v{t0}"]))
                ops.append(valu(f"v_mul_f32 v{t1}, s{sC}, v{t1}",[f"v{t1}"],[f"v{t1}"]))
                ops.append(valu(f"v_cvt_pk_bf16_f32 v{x}, v{t0}, v{t1}",[f"v{t0}",f"v{t1}"],[f"v{x}"]))
            ops.append(Op(f"ds_write_b128 v{base}, {rng('v',d,4)} offset:{off+1024*j}","W",rd=R("v",d,4)+[f"v{base}"]))
    def vproc(g):
        base,off=((vW,0),(vW,32768),(vW1,0))[g]
        r0=96+32*g
        for b in range(8):
            t=200+4*(b%2)
            for q in range(4):
                lo=r0+4*(2*q)+b//2; hi=r0+4*(2*q+1)+b//2
                ops.append(valu(f"v_perm_b32 v{t+q}, v{hi}, v{lo}, s{sPH if b%2 else sPL}",[f"v{hi}",f"v{lo}"],[f"v{t+q}"]))
            ops.append(Op(f"ds_write_b128 v{base}, {rng('v',t,4)} offset:{off+1024*b}","W",rd=R("v",t,4)+[f"v{base}"]))
    kproc(0)
    vload(2)
    kproc(1); kproc(2)
    ops.append(Bar("s_waitcnt lgkmcnt(0)")); ops.append(Bar("s_barrier"))
    for s in range(NRES):
        for j in range(8): ops.append(dsread("a",aKR+32*s+4*j,(8+s)*8192+1024*j,"kr"))
    vproc(0); vproc(1)
    ops.append(Bar("s_waitcnt lgkmcnt(0)")); ops.append(Bar("s_barrier"))
    vproc(2)
    ops.append(Bar("s_waitcnt vmcnt(0) lgkmcnt(0)")); ops.append(Bar("s_barrier"))
    return ops

def slow_path():
    ops=[]
    ops.append(S(f"s_lshl_b32 s{sTmp}, s35, 12",wr=[f"s{sTmp}"]))
    ops.extend(qloads(S(f"s_add_u32 s{sQo}, s{sQB}, s{sTmp}",wr=[f"s{sQo}"]),"a",aQ))
    c=vC
    def kl(s):
        if s>=NRES:
            for j in range(8): ops.append(dsread("a",aKF+4*j,k_lds(s,j),"kf"))
    def chain(s,kb,d,cc):
        for ks in range(4): ops.append(mfma(d,kfrag(s,4*kb+ks),("a",aQ+4*ks),cc if ks==0 else d))
    for s in range(12):
        kl(s); chain(s,0,vS,None); chain(s,1,vS+4,None)
        for r in range(4):
            if s==0: ops.append(valu(f"v_max_f32 v{c+r}, v{vS+r}, v{vS+4+r}",[f"v{vS+r}",f"v{vS+4+r}"],[f"v{c+r}"]))
            else: ops.append(valu(f"v_max3_f32 v{c+r}, v{c+r}, v{vS+r}, v{vS+4+r}",[f"v{c+r}",f"v{vS+r}",f"v{vS+4+r}"],[f"v{c+r}"]))
    ops.extend(max_ops(c))
    for r in range(4): ops.append(valu(f"v_mov_b32 v{c+r}, v{vM0}",[f"v{vM0}"],[f"v{c+r}"]))
    for s in range(12):
        kl(s)
        for b in range(8): ops.append(dsread("a",aVF+4*b,v_lds(s,b),"vf"))
        chain(s,0,vS,c); chain(s,1,vS+4,c)
        ops.extend(sm_ops(vS,vP))
        ops.append(mfma(vL,("v",vP),("v",vONE),None if s==0 else vL))
        for b in range(8): ops.append(mfma(vO+4*b,("v",vP),("a",aVF+4*b),None if s==0 else vO+4*b))
    ops.extend(epilogue(vO,vL,S(f"s_mov_b32 s{sOo}, s{sQo}",rd=[f"s{sQo}"],wr=[f"s{sOo}"]),None))
    return ops

HEADER = open("standalone__gqa_softmax__near_ridge.s.ref").read().split("; @launch")[0]

def gen(path):
    st,n1=finalize(staging_v1(),False)
    mp=schedule(main_prog())
    mt,n2=finalize(mp)
    sp,n3=finalize(slow_path(),False)
    print("nops",n1,n2,n3,"instrs",len(st),len(mt),len(sp))
    s=HEADER+"; @launch grid=(256,1,1) block=(256,1,1) lds=163840\n"
    s+=f""".amdgcn_target "amdgcn-amd-amdhsa--gfx950"
.text
.globl {NAME}
.p2align 8
.type {NAME},@function
{NAME}:"""
    s+=setup_text()
    s+="\n".join(" "+x for x in st)+"\n"
    s+="\n".join(" "+x for x in mt)+"\n"
    s+=f"""L_slow:
 s_cmp_eq_u32 s{sFL}, 0
 s_cbranch_scc1 L_end
 s_waitcnt vmcnt(0) lgkmcnt(0)
 s_nop 15
 s_ff1_i32_b32 s35, s{sFL}
 s_bitset0_b32 s{sFL}, s35
"""
    s+="\n".join(" "+x for x in sp)+"\n"
    s+=""" s_branch L_slow
L_end:
 s_endpgm
.fill 4096, 4, 0xbf800000
.section .rodata,"a"
.p2align 6
.amdhsa_kernel %s
  .amdhsa_next_free_vgpr 512
  .amdhsa_next_free_sgpr 64
  .amdhsa_accum_offset 256
  .amdhsa_group_segment_fixed_size 0
  .amdhsa_kernarg_size 48
  .amdhsa_user_sgpr_count 2
  .amdhsa_user_sgpr_kernarg_segment_ptr 1
  .amdhsa_system_sgpr_workgroup_id_x 1
.end_amdhsa_kernel
""" % NAME
    open(path,"w").write(s)
if __name__=="__main__":
    out=sys.argv[1] if len(sys.argv)>1 else "k1.s"
    gen(out)
    from build import build
    print(build(out))
```

```python
import sys, struct, math
from sched import *
NAME="standalone__gqa_softmax__near_ridge_kernel"
def f2u(x): return struct.unpack("<I",struct.pack("<f",x))[0]
CSCALE = f2u(math.log2(math.e)/math.sqrt(128.0))
THRESH = f2u(2.0**60)

vO=0; vL=128; vC=144; vS=160; vP=176; vST=184; vLS=216; vQL=220; vONE=236; vT=240
vA0=244; vA1=245; vA2=246; vQO=247; vM0=248; vM1=249
aQ=0; aKR=64; aKF=192; aVF=224
sQ,sK,sV,sO = 8,12,16,20
sW=24; sQB=25; sKV=26; sC=27; sTH=28; sFL=29; sPL=30; sPH=31; sQo=32; sOo=33; sTmp=34
NRES=4
MF="v_mfma_f32_16x16x32_bf16"
LDNT=" nt"; STNT=" nt"

def lds_addr(off):
    b=off>>16
    return (vA0,vA1,vA2)[b], off&0xffff
def k_lds(s,j): return 98304+(s-NRES)*8192+j*1024
def v_lds(s,b): return s*8192+b*1024

def mfma(d,a,b,c,tag=None):
    ct = "0" if c is None else rng("v",c,4)
    return Op(f"{MF} {rng('v',d,4)}, {rng(a[0],a[1],4)}, {rng(b[0],b[1],4)}, {ct}","M",
              rd=R(a[0],a[1],4)+R(b[0],b[1],4), wr=R("v",d,4), rc=[] if c is None else R("v",c,4), tag=tag)
def dsread(f,base,off,tag,extra=()):
    a,o=lds_addr(off)
    return Op(f"ds_read_b128 {rng(f,base,4)}, v{a} offset:{o}","D",rd=[f"v{a}"]+list(extra),wr=R(f,base,4),tag=tag)
def valu(text,rd,wr,kind="V",tag=None): return Op(text,kind,rd=rd,wr=wr,tag=tag)

def kfrag(s,j):
    return ("a", aKR+32*s+4*j) if s<NRES else ("a", aKF+4*j)

def qloads(idx_expr_op, dstf, dst, tag="ql", lat=None):
    ops=[idx_expr_op]
    for ks in range(4):
        ops.append(Op(f"buffer_load_dwordx4 {rng(dstf,dst+4*ks,4)}, v{vQO}, s[{sQ}:{sQ+3}], s{sQo} offen offset:{64*ks}{LDNT}","L",
                      rd=[f"v{vQO}",f"s{sQo}"],wr=R(dstf,dst+4*ks,4),tag=tag,lat=lat))
    return ops

def max_ops(c, tag="max"):
    a,b=vM0,vM1
    return [
      valu(f"v_max3_f32 v{a}, v{c}, v{c+1}, v{c+2}",R("v",c,3),[f"v{a}"],tag=tag),
      valu(f"v_max_f32 v{a}, v{a}, v{c+3}",[f"v{a}",f"v{c+3}"],[f"v{a}"],tag=tag),
      valu(f"v_mov_b32 v{b}, v{a}",[f"v{a}"],[f"v{b}"],tag=tag),
      valu(f"v_permlane16_swap_b32 v{a}, v{b}",[f"v{a}",f"v{b}"],[f"v{a}",f"v{b}"],"P",tag=tag),
      valu(f"v_max_f32 v{a}, v{a}, v{b}",[f"v{a}",f"v{b}"],[f"v{a}"],tag=tag),
      valu(f"v_mov_b32 v{b}, v{a}",[f"v{a}"],[f"v{b}"],tag=tag),
      valu(f"v_permlane32_swap_b32 v{a}, v{b}",[f"v{a}",f"v{b}"],[f"v{a}",f"v{b}"],"P",tag=tag),
      valu(f"v_min_f32 v{a}, -v{a}, -v{b}",[f"v{a}",f"v{b}"],[f"v{a}"],tag=tag),
    ]

def epilogue(src, lsrc, soff_op, flagbit, tag="epi"):
    ops=[]
    if flagbit is not None:
        ops+=[valu(f"v_max3_f32 v{vT}, v{lsrc}, v{lsrc+1}, v{lsrc+2}",R("v",lsrc,3),[f"v{vT}"],tag=tag),
              valu(f"v_max_f32 v{vT}, v{vT}, v{lsrc+3}",[f"v{vT}",f"v{lsrc+3}"],[f"v{vT}"],tag=tag),
              valu(f"v_cmp_lt_f32 vcc, s{sTH}, v{vT}",[f"v{vT}",f"s{sTH}"],["vcc"],tag=tag),
              Op("s_cmp_lg_u64 vcc, 0","S",rd=["vcc"],wr=["scc"],tag=tag),
              Op(f"s_cselect_b32 s{sTmp}, {1<<flagbit}, 0","S",rd=["scc"],wr=[f"s{sTmp}"],tag=tag),
              Op(f"s_or_b32 s{sFL}, s{sFL}, s{sTmp}","S",rd=[f"s{sFL}",f"s{sTmp}"],wr=[f"s{sFL}","scc"],tag=tag)]
    for r in range(4):
        ops.append(valu(f"v_rcp_f32 v{lsrc+r}, v{lsrc+r}",[f"v{lsrc+r}"],[f"v{lsrc+r}"],"E",tag=tag))
    ops.append(soff_op)
    for r in range(4):
        for j in range(4):
            x,y=src+8*j+r, src+8*j+4+r
            ops.append(valu(f"v_mul_f32 v{x}, v{x}, v{lsrc+r}",[f"v{x}",f"v{lsrc+r}"],[f"v{x}"],tag=tag))
            ops.append(valu(f"v_mul_f32 v{y}, v{y}, v{lsrc+r}",[f"v{y}",f"v{lsrc+r}"],[f"v{y}"],tag=tag))
            ops.append(valu(f"v_cvt_pk_bf16_f32 v{vT+j}, v{x}, v{y}",[f"v{x}",f"v{y}"],[f"v{vT+j}"],tag=tag))
        ops.append(Op(f"buffer_store_dwordx4 {rng('v',vT,4)}, v{vA0}, s[{sO}:{sO+3}], s{sOo} offen offset:{1024*r}{STNT}","T",
                      rd=R("v",vT,4)+[f"v{vA0}",f"s{sOo}"],tag=tag))
    return ops

def sm_ops(sb,pb,tag="sm"):
    ops=[]
    for j in range(4):
        for e in range(2):
            r=sb+2*j+e
            ops.append(valu(f"v_exp_f32 v{r}, v{r}",[f"v{r}"],[f"v{r}"],"E",tag=tag))
        ops.append(valu(f"v_cvt_pk_bf16_f32 v{pb+j}, v{sb+2*j}, v{sb+2*j+1}",R("v",sb+2*j,2),[f"v{pb+j}"],tag=tag))
    return ops

def soff(reg, idx): return Op(f"s_add_u32 s{reg}, s{sQB}, {idx*4096}","S",rd=[f"s{sQB}"],wr=[f"s{reg}","scc"],tag="soff")

def main_prog():
    OFF=[0,3,6,9]
    units=[]
    for tau in range(12*6+OFF[3]):
        for t in range(4):
            if tau<12: p,k=0,tau
            else:
                x=tau-OFF[t]
                if x<12 or x>=72: continue
                p,k=x//12,x%12
            units.append(dict(t=t,p=p,tau=tau,s=tau%12,first=(k==0),last=(k==11)))
    nU=len(units)
    for i,u in enumerate(units):
        u["i"]=i; u["newstep"]= (i==0 or units[i-1]["tau"]!=u["tau"])
    land={}
    for p in range(1,6):
        for t in range(4): land[(t,p)]=("v",vQL)
    land[(1,1)]=("v",vST); land[(2,1)]=None; land[(3,1)]=None
    ql_order=[(t,p) for p in range(1,6) for t in range(4) if land[(t,p)]==("v",vQL)]
    prog=[]
    def emit_qload(t,p):
        l=land[(t,p)]
        if l is None: prog.extend(qloads(soff(sQo,4*p+t),"a",aQ+16*t))
        else: prog.extend(qloads(soff(sQo,4*p+t),l[0],l[1]))
    emit_qload(0,1); emit_qload(1,1)
    def chain(u,kb,d,c):
        for ks in range(4):
            prog.append(mfma(d,kfrag(u["s"],4*kb+ks),("a",aQ+16*u["t"]+4*ks), c if ks==0 else d, tag="qk"))
    def kloads(u):
        if u["newstep"] and u["s"]>=NRES and not u.get("kl"):
            u["kl"]=True
            for j in range(8): prog.append(dsread("a",aKF+4*j,k_lds(u["s"],j),"kf"))
    def hoist(u):
        c=vC+4*u["t"]; sb=vS+8*(u["i"]%2)
        chain(u,0,c,None)
        u["post"]=max_ops(c)
        for r in range(4): u["post"].append(valu(f"v_add_f32 v{sb+r}, v{c+r}, v{vM0}",[f"v{c+r}",f"v{vM0}"],[f"v{sb+r}"],tag="max"))
        for r in range(4): u["post"].append(valu(f"v_mov_b32 v{c+r}, v{vM0}",[f"v{vM0}"],[f"v{c+r}"],tag="max"))
        u["hoisted"]=True
    for t in range(4): hoist(units[t])
    for i in range(-1,nU):
        nx=units[i+1] if i+1<nU else None
        n2=units[i+2] if i+2<nU else None
        if nx: kloads(nx)
        if n2 and n2["first"] and not n2.get("hoisted"):
            assert n2["s"]<NRES or n2["tau"]==nx["tau"], n2
            hoist(n2)
        if nx:
            c=vC+4*nx["t"]; sb=vS+8*(nx["i"]%2)
            if nx["first"]:
                prog.extend(nx["post"])
                chain(nx,1,sb+4,c)
            else:
                chain(nx,0,sb,c); chain(nx,1,sb+4,c)
            if nx["last"] and nx["p"]<5:
                t,p=nx["t"],nx["p"]+1; l=land[(t,p)]
                if l is None: emit_qload(t,p)
                else:
                    for r in range(16):
                        prog.append(valu(f"v_accvgpr_write_b32 a{aQ+16*t+r}, v{l[1]+r}",[f"v{l[1]+r}"],[f"a{aQ+16*t+r}"],tag="qcp"))
                    if l==("v",vQL):
                        k=ql_order.index((t,p))
                        if k+1<len(ql_order): emit_qload(*ql_order[k+1])
        if i>=0:
            u=units[i]; t=u["t"]; pb=vP+4*(i%2)
            if u["newstep"]:
                for b in range(8): prog.append(dsread("a",aVF+4*b,v_lds(u["s"],b),"vf"))
            stage = u["last"] and 1<=u["p"]<5
            lo=vL+4*t
            prog.append(mfma(vLS if stage else lo,("v",pb),("v",vONE),None if u["first"] else lo,tag="l"))
            for b in range(8):
                o=vO+32*t+4*b
                prog.append(mfma(vST+4*b if stage else o,("v",pb),("a",aVF+4*b),None if u["first"] else o,tag="pv"))
            if u["last"]:
                idx=4*u["p"]+t
                prog.extend(epilogue(vST if stage else vO+32*t, vLS if stage else lo, soff(sOo,idx), idx))
        if nx:
            prog.extend(sm_ops(vS+8*(nx["i"]%2), vP+4*(nx["i"]%2)))
    return prog

def S(t,rd=(),wr=()): return Op(t,"S",rd=rd,wr=wr)
def Bar(t): return Op(t,"B")

def setup_text():
    return f"""
 s_cmp_ge_u32 s2, 256
 s_cbranch_scc1 L_end
 s_load_dwordx4 s[36:39], s[0:1], 0
 s_load_dwordx4 s[40:43], s[0:1], 16
 s_getpc_b64 s[44:45]
 v_lshlrev_b32 v1, 7, v0
 global_load_dword v250, v1, s[44:45]
 v_add_u32 v1, 0x8000, v1
 global_load_dword v251, v1, s[44:45]
 v_add_u32 v1, 0x8000, v1
 global_load_dword v252, v1, s[44:45]
 v_and_b32 v1, 63, v0
 v_lshrrev_b32 v2, 6, v0
 v_lshlrev_b32 v{vA0}, 4, v1
 v_readfirstlane_b32 s{sW}, v2
 v_add_u32 v{vA1}, 0x10000, v{vA0}
 v_add_u32 v{vA2}, 0x20000, v{vA0}
 v_and_b32 v3, 15, v1
 v_lshrrev_b32 v4, 4, v1
 v_and_b32 v5, 3, v3
 v_lshrrev_b32 v6, 2, v3
 v_lshl_add_u32 v5, v5, 2, v6
 v_lshlrev_b32 v5, 8, v5
 v_lshl_add_u32 v{vQO}, v4, 4, v5
 v_lshlrev_b32 v5, 8, v3
 v_lshl_add_u32 v253, v4, 4, v5
 v_lshlrev_b32 v5, 10, v4
 v_lshl_add_u32 v254, v3, 4, v5
 v_lshlrev_b32 v5, 13, v2
 v_add_u32 v255, v5, v{vA0}
 v_mov_b32 v{vONE}, 0x3f803f80
 v_mov_b32 v{vONE+1}, 0x3f803f80
 v_mov_b32 v{vONE+2}, 0x3f803f80
 v_mov_b32 v{vONE+3}, 0x3f803f80
 s_mov_b32 s{sC}, {CSCALE:#x}
 s_mov_b32 s{sTH}, {THRESH:#x}
 s_mov_b32 s{sFL}, 0
 s_mov_b32 s{sPL}, 0x05040100
 s_mov_b32 s{sPH}, 0x07060302
 s_mul_i32 s{sQB}, s2, 393216
 s_mul_i32 s{sKV}, s{sW}, 98304
 s_add_u32 s{sQB}, s{sQB}, s{sKV}
 s_mul_i32 s{sKV}, s2, 98304
 s_lshl_b32 s{sTmp}, s{sW}, 13
 s_add_u32 s{sKV}, s{sKV}, s{sTmp}
 s_waitcnt lgkmcnt(0)
 s_mov_b32 s{sQ}, s36
 s_mov_b32 s{sQ+1}, s37
 s_mov_b32 s{sQ+2}, 100663296
 s_mov_b32 s{sQ+3}, 0x20000
 s_mov_b32 s{sK}, s38
 s_mov_b32 s{sK+1}, s39
 s_mov_b32 s{sK+2}, 25165824
 s_mov_b32 s{sK+3}, 0x20000
 s_mov_b32 s{sV}, s40
 s_mov_b32 s{sV+1}, s41
 s_mov_b32 s{sV+2}, 25165824
 s_mov_b32 s{sV+3}, 0x20000
 s_mov_b32 s{sO}, s42
 s_mov_b32 s{sO+1}, s43
 s_mov_b32 s{sO+2}, 100663296
 s_mov_b32 s{sO+3}, 0x20000
"""

def staging_v1():
    ops=[]
    vW,vW1,vW2=255,192,193
    ops.append(valu(f"v_add_u32 v{vW1}, 0x10000, v{vW}",[f"v{vW}"],[f"v{vW1}"]))
    ops.append(valu(f"v_add_u32 v{vW2}, 0x20000, v{vW}",[f"v{vW}"],[f"v{vW2}"]))
    so=[46+i for i in range(6)]
    for g in range(3):
        for h in range(2):
            ops.append(S(f"s_add_u32 s{so[2*g+h]}, s{sKV}, {g*32768+h*4096}",wr=[f"s{so[2*g+h]}"]))
    def kload(g):
        for j in range(8):
            kb,ks=j//4,j%4; d=32*g+4*j
            ops.append(Op(f"buffer_load_dwordx4 {rng('v',d,4)}, v253, s[{sK}:{sK+3}], s{so[2*g+kb]} offen offset:{64*ks}{LDNT}","L",wr=R("v",d,4)))
    def vload(g):
        for i in range(8):
            d=96+32*g+4*i
            ops.append(Op(f"buffer_load_dwordx4 {rng('v',d,4)}, v254, s[{sV}:{sV+3}], s{so[2*g+i//4]} offen offset:{256*(i%4)}{LDNT}","L",wr=R("v",d,4)))
    kload(0); kload(1); kload(2)
    vload(0); vload(1)
    for t in range(4):
        ops.extend(qloads(soff(sQo,t),"a",aQ+16*t))
    def kproc(g):
        base,off=((vW1,0),(vW1,32768),(vW2,0))[g]
        for j in range(8):
            d=32*g+4*j
            for e in range(4):
                x=d+e; t0=194+2*(e%2); t1=t0+1
                ops.append(valu(f"v_lshlrev_b32 v{t0}, 16, v{x}",[f"v{x}"],[f"v{t0}"]))
                ops.append(valu(f"v_and_b32 v{t1}, 0xffff0000, v{x}",[f"v{x}"],[f"v{t1}"]))
                ops.append(valu(f"v_mul_f32 v{t0}, s{sC}, v{t0}",[f"v{t0}"],[f"v{t0}"]))
                ops.append(valu(f"v_mul_f32 v{t1}, s{sC}, v{t1}",[f"v{t1}"],[f"v{t1}"]))
                ops.append(valu(f"v_cvt_pk_bf16_f32 v{x}, v{t0}, v{t1}",[f"v{t0}",f"v{t1}"],[f"v{x}"]))
            ops.append(Op(f"ds_write_b128 v{base}, {rng('v',d,4)} offset:{off+1024*j}","W",rd=R("v",d,4)+[f"v{base}"]))
    def vproc(g):
        base,off=((vW,0),(vW,32768),(vW1,0))[g]
        r0=96+32*g
        for b in range(8):
            t=200+4*(b%2)
            for q in range(4):
                lo=r0+4*(2*q)+b//2; hi=r0+4*(2*q+1)+b//2
                ops.append(valu(f"v_perm_b32 v{t+q}, v{hi}, v{lo}, s{sPH if b%2 else sPL}",[f"v{hi}",f"v{lo}"],[f"v{t+q}"]))
            ops.append(Op(f"ds_write_b128 v{base}, {rng('v',t,4)} offset:{off+1024*b}","W",rd=R("v",t,4)+[f"v{base}"]))
    kproc(0)
    vload(2)
    kproc(1); kproc(2)
    ops.append(Bar("s_waitcnt lgkmcnt(0)")); ops.append(Bar("s_barrier"))
    for s in range(NRES):
        for j in range(8): ops.append(dsread("a",aKR+32*s+4*j,(8+s)*8192+1024*j,"kr"))
    vproc(0); vproc(1)
    ops.append(Bar("s_waitcnt lgkmcnt(0)")); ops.append(Bar("s_barrier"))
    vproc(2)
    ops.append(Bar("s_waitcnt vmcnt(0) lgkmcnt(0)")); ops.append(Bar("s_barrier"))
    return ops

def slow_path():
    ops=[]
    ops.append(S(f"s_lshl_b32 s{sTmp}, s35, 12",wr=[f"s{sTmp}"]))
    ops.extend(qloads(S(f"s_add_u32 s{sQo}, s{sQB}, s{sTmp}",wr=[f"s{sQo}"]),"a",aQ))
    c=vC
    def kl(s):
        if s>=NRES:
            for j in range(8): ops.append(dsread("a",aKF+4*j,k_lds(s,j),"kf"))
    def chain(s,kb,d,cc):
        for ks in range(4): ops.append(mfma(d,kfrag(s,4*kb+ks),("a",aQ+4*ks),cc if ks==0 else d))
    for s in range(12):
        kl(s); chain(s,0,vS,None); chain(s,1,vS+4,None)
        for r in range(4):
            if s==0: ops.append(valu(f"v_max_f32 v{c+r}, v{vS+r}, v{vS+4+r}",[f"v{vS+r}",f"v{vS+4+r}"],[f"v{c+r}"]))
            else: ops.append(valu(f"v_max3_f32 v{c+r}, v{c+r}, v{vS+r}, v{vS+4+r}",[f"v{c+r}",f"v{vS+r}",f"v{vS+4+r}"],[f"v{c+r}"]))
    ops.extend(max_ops(c))
    for r in range(4): ops.append(valu(f"v_mov_b32 v{c+r}, v{vM0}",[f"v{vM0}"],[f"v{c+r}"]))
    for s in range(12):
        kl(s)
        for b in range(8): ops.append(dsread("a",aVF+4*b,v_lds(s,b),"vf"))
        chain(s,0,vS,c); chain(s,1,vS+4,c)
        ops.extend(sm_ops(vS,vP))
        ops.append(mfma(vL,("v",vP),("v",vONE),None if s==0 else vL))
        for b in range(8): ops.append(mfma(vO+4*b,("v",vP),("a",aVF+4*b),None if s==0 else vO+4*b))
    ops.extend(epilogue(vO,vL,S(f"s_mov_b32 s{sOo}, s{sQo}",rd=[f"s{sQo}"],wr=[f"s{sOo}"]),None))
    return ops

HEADER = open("standalone__gqa_softmax__near_ridge.s.ref").read().split("; @launch")[0]

STAMP=False
STAMP_AT=408
ABL=lambda o: False
def stamp(k):
    if not STAMP: return []
    return [f"s_memtime s[60:61]",f"s_memrealtime s[62:63]","s_waitcnt lgkmcnt(0)",f"s_mov_b32 s{64+2*k}, s60",f"s_mov_b32 s{65+2*k}, s62"]
def stamp_store(n):
    if not STAMP: return ""
    t=" s_waitcnt vmcnt(0)\n"+"\n".join(" "+x for x in stamp(n-1))+"\n"
    t+=" s_load_dwordx2 s[56:57], s[0:1], 40\n s_waitcnt lgkmcnt(0)\n s_mov_b32 s58, 402653184\n s_mov_b32 s59, 0x20000\n"
    t+=f" s_lshl_b32 s60, s2, 2\n s_add_u32 s60, s60, s{sW}\n s_lshl_b32 s60, s60, 7\n v_mov_b32 v1, s60\n"
    for k in range(2*n):
        t+=f" v_mov_b32 v2, s{64+k}\n buffer_store_dword v2, v1, s[56:59], 0 offen offset:{4*k}\n"
    return t
def insert_stamps(mt, every, k0):
    if not STAMP: return mt,k0
    out=[];c=0;k=k0
    for x in mt:
        if x.startswith("v_mfma"):
            c+=1
            if (c in every if isinstance(every,(list,tuple)) else c%every==0):
                out+=["s_waitcnt lgkmcnt(0)"]+stamp(k); k+=1
        out.append(x)
    return out,k
def gen(path):
    st,n1=finalize(staging_v1(),False)
    mp=schedule(main_prog())
    mp=[o for o in mp if not ABL(o)]
    mt,n2=finalize(mp)
    sp,n3=finalize(slow_path(),False)
    print("nops",n1,n2,n3,"instrs",len(st),len(mt),len(sp))
    s=HEADER+"; @launch grid=(256,1,1) block=(256,1,1) lds=163840\n"
    s+=f""".amdgcn_target "amdgcn-amd-amdhsa--gfx950"
.text
.globl {NAME}
.p2align 8
.type {NAME},@function
{NAME}:"""
    mt,nk=insert_stamps(mt,STAMP_AT,2)
    s+="\n"+"\n".join(" "+x for x in stamp(0))
    s+=setup_text()
    s+="\n".join(" "+x for x in st)+"\n"
    s+="\n".join(" "+x for x in stamp(1))+"\n"
    s+="\n".join(" "+x for x in mt)+"\n"
    s+=stamp_store(nk+1)
    s+=f"""L_slow:
 s_cmp_eq_u32 s{sFL}, 0
 s_cbranch_scc1 L_end
 s_waitcnt vmcnt(0) lgkmcnt(0)
 s_nop 15
 s_ff1_i32_b32 s35, s{sFL}
 s_bitset0_b32 s{sFL}, s35
"""
    s+="\n".join(" "+x for x in sp)+"\n"
    s+=""" s_branch L_slow
L_end:
 s_endpgm
.fill 4096, 4, 0xbf800000
.section .rodata,"a"
.p2align 6
.amdhsa_kernel %s
  .amdhsa_next_free_vgpr 512
  .amdhsa_next_free_sgpr 100
  .amdhsa_accum_offset 256
  .amdhsa_group_segment_fixed_size 0
  .amdhsa_kernarg_size 48
  .amdhsa_user_sgpr_count 2
  .amdhsa_user_sgpr_kernarg_segment_ptr 1
  .amdhsa_system_sgpr_workgroup_id_x 1
.end_amdhsa_kernel
""" % NAME
    open(path,"w").write(s)
if __name__=="__main__":
    out=sys.argv[1] if len(sys.argv)>1 else "k1.s"
    if len(sys.argv)>2 and sys.argv[2]=="stamp": STAMP=True
    gen(out)
    from build import build
    print(build(out))
```

```python
import re, heapq

def R(f, lo, n=1):
    return [f"{f}{i}" for i in range(lo, lo+n)]
def rng(f, lo, n):
    return f"{f}{lo}" if n == 1 else f"{f}[{lo}:{lo+n-1}]"

class Op:
    __slots__ = ("id","text","kind","rd","wr","rc","cost","preds","succs","dl","hd","pos","midx","np","earliest","tag","lat","due","hard")
    def __init__(s, text, kind, rd=(), wr=(), rc=(), cost=None, tag=None, earliest=None, lat=None, due=None, hard=None):
        s.text=text; s.kind=kind; s.rd=list(rd); s.wr=list(wr); s.rc=list(rc)
        s.cost = cost if cost is not None else {"M":8,"V":4,"P":4,"E":8,"D":4,"W":4,"L":8,"T":8,"S":4,"X":8,"B":4}[kind]
        s.preds=[]; s.succs=[]; s.pos=None; s.midx=None; s.tag=tag; s.earliest=earliest; s.lat=lat; s.due=due; s.hard=hard
VALU = ("V","P","E")
ASYNC_DS=("D",); ASYNC_VM=("L",)

def req_ws(p, c, dep, reg):
    if p.kind=="M":
        if dep in ("RAW","WAW"):
            if c.kind=="M":
                if dep=="RAW":
                    if reg in c.rc and reg not in c.rd:
                        return 0 if c.rc==p.wr else 6
                    return 8
                return 0
            return 8
        if dep=="WAR":
            if reg in p.rc and c.kind!="M": return 3
            return 0
    if p.kind in VALU:
        if dep=="RAW":
            if c.kind=="M": return 2
            if c.kind=="P": return 2
            if p.kind=="E" and c.kind in ("V","P"): return 1
            if reg.startswith("s") or reg=="vcc":
                if c.kind in ("L","T","X"): return 5
                if c.kind in VALU: return 2
                return 1
        return 0
    if p.kind in ("T","W") and dep=="WAR":
        return 2
    if p.kind=="S" and dep=="RAW" and reg=="m0": return 1
    return 0

def build_deps(prog):
    lastw={}; readers={}
    for i,o in enumerate(prog):
        o.id=i; o.preds=[]; o.succs=[]
    for o in prog:
        deps={}
        def add(p,dep,reg):
            if p is o: return
            deps.setdefault(p.id,[p,[]])[1].append((dep,reg))
        for r in o.rd+o.rc:
            if r in lastw: add(lastw[r],"RAW",r)
        for r in o.wr:
            if r in lastw: add(lastw[r],"WAW",r)
            for q in readers.get(r,()): add(q,"WAR",r)
        for r in o.rd+o.rc: readers.setdefault(r,[]).append(o)
        for r in o.wr:
            lastw[r]=o; readers[r]=[]
        for p,lst in deps.values():
            ws=max(req_ws(p,o,d,r) for d,r in lst)
            raw=any(d=="RAW" for d,_ in lst)
            o.preds.append((p,ws,raw)); p.succs.append((o,ws,raw))

RANK={"B":0,"S":0,"D":1,"W":1,"L":1,"T":1,"X":1,"V":2,"P":2,"E":2}
DS_LAT=9
VM_LAT=150
CAP=8
W_SPACE=4
V_SPACE=1
VM_EARLY=50
LATE_OVERFLOW=True

def schedule(prog, verbose=True):
    build_deps(prog)
    ms=[o for o in prog if o.kind=="M"]
    for i,m in enumerate(ms): m.midx=i
    N=len(ms); INF=10**9
    def soft(p,c,ws,raw):
        if raw and p.kind=="D": return DS_LAT
        if raw and p.kind in "LX": return p.lat if p.lat is not None else VM_LAT
        if raw and p.kind=="W": return 4
        if c.kind=="M": return 2 if ws else 0
        if RANK[p.kind]>RANK[c.kind]: return 1
        return 1 if (ws or p.kind=="E" or c.kind=="E") else 0
    for o in reversed(prog):
        if o.kind=="M": continue
        dl=INF; hd=INF
        for c,ws,raw in o.succs:
            if c.kind=="M":
                dl=min(dl,c.midx-1-soft(o,c,ws,raw)); hd=min(hd,c.midx-1)
            else:
                dl=min(dl,c.dl-soft(o,c,ws,raw)); hd=min(hd,c.hd)
        if o.due is not None:
            dl=min(dl,o.due)
            if o.due<0: hd=-1
        if o.hard is not None:
            dl=min(dl,o.hard); hd=min(hd,o.hard)
        o.dl=dl; o.hd=hd
    for o in prog: o.np=len(o.preds); o.pos=None
    ready=[o for o in prog if o.np==0 and o.kind!="M"]
    out=[]
    gapof={}
    cyc=0; over=0; stats={}; hist={}
    def release(o):
        for c,_,_ in o.succs:
            c.np-=1
            if c.np==0 and c.kind!="M": ready.append(c)
    lastw_gap=[-100]; lastv_gap=[-100]
    byhd={}
    for o in prog:
        if o.kind!="M": byhd.setdefault(o.hd,[]).append(o)
    for g in range(-1,N):
        if g>=0:
            m=ms[g]; assert m.np==0, (m.text,[p.text for p,_,_ in m.preds if p.pos is None])
            m.pos=len(out); out.append(m); gapof[m.id]=g; release(m)
        cur=[]
        used=0; sfree=True; late=[]
        base=len(out)
        def place(o):
            nonlocal used,sfree
            ready.remove(o); cur.append(o); gapof[o.id]=g; o.pos=-2
            if o.kind=="W": lastw_gap[0]=g
            if o.kind in "LTX": lastv_gap[0]=g
            if o.kind=="S" and sfree: sfree=False
            else: used+=o.cost
            release(o)
        def ok(o):
            if o.earliest is not None and g<o.earliest: return False
            if o.kind=="L" and g<o.dl-VM_EARLY: return False
            if o.kind=="W" and g-lastw_gap[0]<W_SPACE: return False
            if o.kind in "LTX" and g-lastv_gap[0]<V_SPACE: return False
            for p,ws,raw in o.preds:
                pg=gapof[p.id]
                if p.kind=="M":
                    if ws and (base-p.pos-1+sum(1 for x in cur if RANK[x.kind]<=RANK[o.kind]))<ws: return False
                else:
                    if pg==g:
                        if RANK[p.kind]>RANK[o.kind] or ws or (raw and p.kind in "DLXW"): return False
                    else:
                        if raw and p.kind=="D" and g-pg<DS_LAT: return False
                        if raw and p.kind=="W" and g-pg<4: return False
                        if raw and p.kind in "LX" and g-pg<(p.lat if p.lat is not None else VM_LAT): return False
                        if ws and (base-p.pos-1)<ws: return False
            return True
        last = (g==N-1)
        while True:
            cands=[o for o in ready if ((o.kind=="S" and sfree) or used+o.cost<=CAP) and ok(o)]
            if g<0: break
            if not cands: break
            o=min(cands,key=lambda x:(x.kind!="W",x.dl,x.id)); place(o)
        while g>=0 and LATE_OVERFLOW:
            cands=[o for o in ready if o.dl<=g and ok(o)]
            if not cands: break
            o=min(cands,key=lambda x:(x.dl,x.id)); place(o); late.append(o)
        cur.sort(key=lambda x:RANK[x.kind])
        forced=[]
        while True:
            f=[o for o in ready if o.hd<=g or last]
            if not f: break
            o=min(f,key=lambda x:x.id)
            ready.remove(o); forced.append(o); gapof[o.id]=g; used+=o.cost; release(o)
        for o in cur+forced:
            o.pos=len(out); out.append(o)
        if g>=0:
            c=max(16,8+used); cyc+=c
            if c>16 and not last:
                over+=c-16
                hist[g//68]=hist.get(g//68,0)+c-16
                for o in forced+late: stats[o.tag]=stats.get(o.tag,0)+o.cost
    assert all(o.pos is not None for o in prog)
    if verbose: print(f"sched: {N} mfma, est cycles {cyc}, overflow {over}, forced by tag {stats}\n  overflow per 68 mfma: {hist}")
    return out

def finalize(lin, after_mfma_waits=True):
    ins={}
    dsq=[]; vmq=[]
    ds_done=0; vm_done=0
    pend={}
    lastm=-1
    for i,o in enumerate(lin):
        need_ds=-1; need_vm=-1
        for r in o.rd+o.rc+o.wr:
            if r in pend:
                k,s=pend[r]
                if k=="ds" and s>=ds_done: need_ds=max(need_ds,s)
                if k=="vm" and s>=vm_done: need_vm=max(need_vm,s)
        for k,need,q in (("ds",need_ds,dsq),("vm",need_vm,vmq)):
            if need<0: continue
            p=i
            if after_mfma_waits and lastm>=0 and q[need]<lastm: p=lastm+1
            n=sum(1 for x in q[need+1:] if x<p)
            n=min(n,15 if k=="ds" else 63)
            w=ins.setdefault(p,[None,None]); j=1 if k=="ds" else 0
            w[j]=n if w[j] is None else min(w[j],n)
            if k=="ds": ds_done=need+1
            else: vm_done=need+1
        if o.kind=="B":
            if "lgkmcnt(0)" in o.text: ds_done=len(dsq)
            if "vmcnt(0)" in o.text: vm_done=len(vmq)
        if o.kind in ("D","W"):
            dsq.append(i)
            for r in o.wr: pend[r]=("ds",len(dsq)-1)
        if o.kind in ("L","T","X"):
            vmq.append(i)
            if o.kind in ("L","X"):
                for r in o.wr: pend[r]=("vm",len(vmq)-1)
        if o.kind=="M": lastm=i
    lin2=[]
    for i,o in enumerate(lin):
        if i in ins:
            vm,lg=ins[i]
            t="s_waitcnt"+(f" vmcnt({vm})" if vm is not None else "")+(f" lgkmcnt({lg})" if lg is not None else "")
            lin2.append(Op(t,"S"))
        lin2.append(o)
    out=[]; cnt=0
    lastw={}; readers={}
    nnop=0
    for o in lin2:
        need=0
        for r in o.rd+o.rc:
            if r in lastw:
                p,pp=lastw[r]; need=max(need,req_ws(p,o,"RAW",r)-(cnt-pp-1))
        for r in o.wr:
            if r in lastw:
                p,pp=lastw[r]; need=max(need,req_ws(p,o,"WAW",r)-(cnt-pp-1))
            for p,pp in readers.get(r,()):
                need=max(need,req_ws(p,o,"WAR",r)-(cnt-pp-1))
        if need>0:
            out.append(f"s_nop {need-1}"); cnt+=need; nnop+=1
        out.append(o.text)
        for r in o.rd+o.rc:
            l=readers.setdefault(r,[]); l.append((o,cnt))
            if len(l)>4: del l[0]
        for r in o.wr:
            lastw[r]=(o,cnt); readers[r]=[]
        cnt+=1
    return out,nnop
```

```python
import sys
import gen as G
from gen import *
vB0=250; vB1=251; vB2=252
vKD=245; vVD=246
vKF=253; vVR=254; vVW=255
sKb=36; sVb=37; sLw=38; sD0=39; sD1=40; sD2=41; sD3=42
def lds_addr(off): return (vB0,vB1,vB2)[off>>16], off&0xffff
G.lds_addr=lds_addr
def k_lds(s,j): return 65536+s*8192+j*512
def v_lds(s,b): return s*8192+b*512
G.k_lds=k_lds; G.v_lds=v_lds

P=dict(pre=["K0","Q0","V0","K1","pf","fk0","Q1","fv0","Q2","fk1","Q3"],
       seq=[("V1",0),("K2",24),("V2",56),("K3",92),("fv1",85,125),("V3",130),("fk2",125,225),("K4",170),("V4",210),("fv2",215,262),
            ("K5",250),("fk3",262,360),("V5",290),("fv3",350,398),("fk4",398,496),("fv4",486,534),("fk5",534,632),("fv5",622,670)],
       dma_space=8, dma_lat=0, OFF=[0,3,6,9], wcost=4)

def dma_ops(kind,g,due=None,earliest=None,extra=()):
    ops=[]
    sb = sKb if kind=="K" else sVb
    s0,s1 = (sD0,sD1) if kind=="K" else (sD2,sD3)
    srd = sK if kind=="K" else sV
    vo = vKD if kind=="K" else vVD
    step = 128 if kind=="K" else 512
    reg = (65536 if kind=="K" else 0)+g*16384
    for h,sr in ((0,s0),(1,s1)):
        ops.append(Op(f"s_add_u32 s{sr}, s{sb}, {g*16384+h*4096}","S",rd=[f"s{sb}"],wr=[f"s{sr}","scc"],tag="dma",due=due,earliest=earliest))
    for a in range(4):
        imm=(a%2)*step
        ops.append(Op(f"s_add_u32 m0, s{sLw}, {reg+a*1024-imm}","S",rd=[f"s{sLw}"],wr=["m0","scc"],tag="dma",due=due,earliest=earliest))
        e=None if earliest is None else earliest+a*P.get("dma_space",12)
        ops.append(Op(f"buffer_load_dwordx4 v{vo}, s[{srd}:{srd+3}], s{(s0,s1)[a//2]} offen offset:{imm}{LDNT} lds","X",
                      rd=[f"v{vo}","m0",f"s{(s0,s1)[a//2]}"]+list(extra),wr=[f"raw{kind}{g}_{a}"],tag="dma",due=(due if e is None else e+2),earliest=e,lat=P["dma_lat"]))
    return ops

def fix_k(g,earliest=None):
    ops=[]
    if g==4: ops.append(valu(f"v_add_u32 v{vKF}, 0x10000, v{vKF}",[f"v{vKF}"],[f"v{vKF}"],tag="fix"))
    off=(g%4)*16384
    for a in range(4):
        d=vST+4*a
        ops.append(Op(f"ds_read_b128 {rng('v',d,4)}, v{vKF} offset:{off+1024*a}","D",rd=[f"v{vKF}",f"rawK{g}_{a}"],wr=R("v",d,4),tag="fix",earliest=earliest))
    for a in range(4):
        d=vST+4*a
        for e in range(4):
            x=d+e; t0=vT+2*(e%2); t1=t0+1
            ops.append(valu(f"v_lshlrev_b32 v{t0}, 16, v{x}",[f"v{x}"],[f"v{t0}"],tag="fix"))
            ops.append(valu(f"v_and_b32 v{t1}, 0xffff0000, v{x}",[f"v{x}"],[f"v{t1}"],tag="fix"))
            ops.append(valu(f"v_mul_f32 v{t0}, s{sC}, v{t0}",[f"v{t0}"],[f"v{t0}"],tag="fix"))
            ops.append(valu(f"v_mul_f32 v{t1}, s{sC}, v{t1}",[f"v{t1}"],[f"v{t1}"],tag="fix"))
            ops.append(valu(f"v_cvt_pk_bf16_f32 v{x}, v{t0}, v{t1}",[f"v{t0}",f"v{t1}"],[f"v{x}"],tag="fix"))
        ops.append(Op(f"ds_write_b128 v{vKF}, {rng('v',d,4)} offset:{off+1024*a}","W",rd=R("v",d,4)+[f"v{vKF}"],wr=[f"fixK{g}_{a}"],tag="fix",cost=P["wcost"]))
    return ops
def fix_v(g,earliest=None):
    ops=[]
    if g==4:
        ops.append(valu(f"v_add_u32 v{vVR}, 0x10000, v{vVR}",[f"v{vVR}"],[f"v{vVR}"],tag="fix"))
        ops.append(valu(f"v_add_u32 v{vVW}, 0x10000, v{vVW}",[f"v{vVW}"],[f"v{vVW}"],tag="fix"))
    off=(g%4)*16384
    for i in range(8):
        d=vST+16+2*i
        ops.append(Op(f"ds_read_b64 {rng('v',d,2)}, v{vVR} offset:{off+512*i}","D",rd=[f"v{vVR}",f"rawV{g}_{i//2}"],wr=R("v",d,2),tag="fix",earliest=earliest))
    for q in range(4):
        t=vST+4*(q%2); e,par=q//2,q%2
        for tt in range(4):
            lo=vST+16+2*(2*tt)+e; hi=vST+16+2*(2*tt+1)+e
            ops.append(valu(f"v_perm_b32 v{t+tt}, v{hi}, v{lo}, s{sPH if par else sPL}",[f"v{hi}",f"v{lo}"],[f"v{t+tt}"],tag="fix"))
        ops.append(Op(f"ds_write_b128 v{vVW}, {rng('v',t,4)} offset:{off+512*q}","W",rd=R("v",t,4)+[f"v{vVW}"],wr=[f"fixV{g}_{q}"],tag="fix",cost=P["wcost"]))
    return ops
def barrier(rd,wr): return Op("s_barrier","B",rd=list(rd)+["bar"],wr=list(wr)+["bar"],tag="bar")

def main_prog():
    OFF=P["OFF"]
    units=[]
    for tau in range(12*6+OFF[3]):
        for t in range(4):
            if tau<12: p,k=0,tau
            else:
                x=tau-OFF[t]
                if x<12 or x>=72: continue
                p,k=x//12,x%12
            units.append(dict(t=t,p=p,tau=tau,s=tau%12,first=(k==0),last=(k==11)))
    nU=len(units)
    for i,u in enumerate(units):
        u["i"]=i; u["newstep"]= (i==0 or units[i-1]["tau"]!=u["tau"])
    prog=[]
    qbuf={}
    pending=[(t,p) for p in range(1,6) for t in range(4)]
    def emit_qload(tp,buf,**kw):
        qbuf[tp]=buf
        ops=qloads(soff(sQo,4*tp[1]+tp[0]),buf[0],buf[1])
        for o in ops:
            for k,v in kw.items(): setattr(o,k,v)
        prog.extend(ops)
    def pre(ops):
        for o in ops: o.due=-1
        prog.extend(ops)
    def pubK(g):
        ops=[barrier([f"fixK{g}_{a}" for a in range(4)],[f"pubK{g}"])]
        if g<2:
            for s in (2*g,2*g+1):
                for j in range(8): ops.append(dsread("a",aKR+32*s+4*j,k_lds(s,j),"kr",[f"pubK{g}"]))
        return ops
    def pubV(g):
        rd=[f"fixV{g}_{a}" for a in range(4)]
        if g<2: rd+=R("a",aKR+64*g,64)
        return [barrier(rd,[f"pubV{g}"])]
    def codepf():
        ops=[]
        for k in range(3):
            ops.append(Op(f"global_load_dword v{vLS+k}, v{vLS+3}, s[52:53]","L",rd=[f"v{vLS+3}"],wr=[f"v{vLS+k}"],tag="pf"))
            if k<2: ops.append(valu(f"v_add_u32 v{vLS+3}, 0x8000, v{vLS+3}",[f"v{vLS+3}"],[f"v{vLS+3}"],tag="pf"))
        return ops
    def item_ops(item,e=None):
        g=int(item[-1])
        if item[0] in "KV": return dma_ops(item[0],g,earliest=e,extra=[f"pubV{g-4}"] if (item[0]=="V" and g>=4) else [])
        if item[:2]=="fk": return fix_k(g,e)+pubK(g)
        if item[:2]=="fv": return fix_v(g,e)+pubV(g)
    for item in P["pre"]:
        if item[0]=="Q": emit_qload((int(item[1]),0),("a",aQ+16*int(item[1])),due=-1,lat=0)
        elif item=="pf": pre(codepf())
        else: pre(item_ops(item))
    for it in P["seq"]:
        item,e=it[0],it[1]
        ops=item_ops(item,e)
        if len(it)>2:
            fx=[o for o in ops if o.tag in ("fix","bar")]
            for k,o in enumerate(fx): o.due=int(e+12+(it[2]-e-12)*(k+1)/len(fx))
        prog.extend(ops)
    emit_qload(pending.pop(0),("v",vQL))
    def chain(u,kb,d,c):
        qb=qbuf[(u["t"],u["p"])]
        for ks in range(4):
            prog.append(mfma(d,kfrag(u["s"],4*kb+ks),(qb[0],qb[1]+4*ks), c if ks==0 else d, tag="qk"))
    def kloads(u):
        if u["newstep"] and u["s"]>=NRES and not u.get("kl"):
            u["kl"]=True
            for j in range(8): prog.append(dsread("a",aKF+4*j,k_lds(u["s"],j),"kf",[f"pubK{u['s']//2}"]))
    def hoist(u):
        c=vC+4*u["t"]; sb=vS+8*(u["i"]%2)
        chain(u,0,c,None)
        u["post"]=max_ops(c)
        for r in range(4): u["post"].append(valu(f"v_add_f32 v{sb+r}, v{c+r}, v{vM0}",[f"v{c+r}",f"v{vM0}"],[f"v{sb+r}"],tag="max"))
        for r in range(4): u["post"].append(valu(f"v_mov_b32 v{c+r}, v{vM0}",[f"v{vM0}"],[f"v{c+r}"],tag="max"))
        u["hoisted"]=True
    hoist(units[0])
    for i in range(-1,nU):
        nx=units[i+1] if i+1<nU else None
        n2=units[i+2] if i+2<nU else None
        if nx: kloads(nx)
        if n2 and n2["first"] and not n2.get("hoisted"):
            assert n2["s"]<NRES or n2["tau"]==nx["tau"], n2
            hoist(n2)
        if nx:
            c=vC+4*nx["t"]; sb=vS+8*(nx["i"]%2)
            if nx["first"]:
                prog.extend(nx["post"])
                chain(nx,1,sb+4,c)
            else:
                chain(nx,0,sb,c); chain(nx,1,sb+4,c)
            if nx["last"] and pending:
                emit_qload(pending.pop(0),qbuf[(nx["t"],nx["p"])])
        if i>=0:
            u=units[i]; t=u["t"]; pb=vP+4*(i%2)
            if u["newstep"]:
                for b in range(8): prog.append(dsread("a",aVF+4*b,v_lds(u["s"],b),"vf",[f"pubV{u['s']//2}"]))
            stage = u["last"] and (1<=u["p"]<5 or (u["p"]==0 and t==0))
            lo=vL+4*t
            prog.append(mfma(vLS if stage else lo,("v",pb),("v",vONE),None if u["first"] else lo,tag="l"))
            for b in range(8):
                o=vO+32*t+4*b
                prog.append(mfma(vST+4*b if stage else o,("v",pb),("a",aVF+4*b),None if u["first"] else o,tag="pv"))
            if u["last"]:
                idx=4*u["p"]+t
                ep=epilogue(vST if stage else vO+32*t, vLS if stage else lo, soff(sOo,idx), idx)
                if u["p"]==0 and t==0: held=ep
                else:
                    prog.extend(ep)
                    if u["p"]==0 and t==3: prog.extend(held)
        if nx:
            prog.extend(sm_ops(vS+8*(nx["i"]%2), vP+4*(nx["i"]%2)))
    return prog

def setup_text():
    return f"""
 s_cmp_ge_u32 s2, 256
 s_cbranch_scc1 L_end
 s_load_dwordx4 s[44:47], s[0:1], 0
 s_load_dwordx4 s[48:51], s[0:1], 16
 s_getpc_b64 s[52:53]
 v_lshlrev_b32 v{vLS+3}, 7, v0
 v_and_b32 v1, 63, v0
 v_lshrrev_b32 v2, 6, v0
 v_lshlrev_b32 v{vA0}, 4, v1
 v_readfirstlane_b32 s{sW}, v2
 v_and_b32 v3, 15, v1
 v_lshrrev_b32 v4, 4, v1
 v_and_b32 v7, 7, v1
 v_lshrrev_b32 v8, 3, v1
 v_lshlrev_b32 v5, 8, v7
 v_lshl_add_u32 v{vKD}, v8, 4, v5
 v_and_b32 v5, 3, v8
 v_lshrrev_b32 v6, 5, v1
 v_lshl_add_u32 v5, v5, 2, v6
 v_lshlrev_b32 v5, 8, v5
 v_lshl_add_u32 v{vVD}, v7, 4, v5
 s_mul_i32 s{sKV}, s2, 98304
 s_lshr_b32 s{sTmp}, s{sW}, 1
 s_lshl_b32 s{sTmp}, s{sTmp}, 13
 s_add_u32 s{sKV}, s{sKV}, s{sTmp}
 s_and_b32 s{sTmp}, s{sW}, 1
 s_lshl_b32 s{sKb}, s{sTmp}, 11
 s_add_u32 s{sKb}, s{sKb}, s{sKV}
 s_lshl_b32 s{sVb}, s{sTmp}, 7
 s_add_u32 s{sVb}, s{sVb}, s{sKV}
 s_lshl_b32 s{sLw}, s{sW}, 12
 s_mul_i32 s{sQB}, s2, 393216
 s_mul_i32 s{sTmp}, s{sW}, 98304
 s_add_u32 s{sQB}, s{sQB}, s{sTmp}
 v_and_b32 v5, 3, v3
 v_lshrrev_b32 v6, 2, v3
 v_lshl_add_u32 v5, v5, 2, v6
 v_lshlrev_b32 v5, 8, v5
 v_lshl_add_u32 v{vQO}, v4, 4, v5
 v_lshrrev_b32 v5, 3, v3
 v_lshlrev_b32 v5, 12, v5
 v_lshl_add_u32 v5, v4, 7, v5
 v_lshl_add_u32 v{vB0}, v7, 4, v5
 v_add_u32 v{vB1}, 0x10000, v{vB0}
 v_add_u32 v{vB2}, 0x20000, v{vB0}
 v_lshlrev_b32 v9, 12, v2
 v_add_u32 v{vKF}, v9, v{vA0}
 v_add_u32 v{vKF}, 0x10000, v{vKF}
 v_lshl_add_u32 v{vVR}, v1, 3, v9
 v_and_b32 v5, 1, v1
 v_lshl_add_u32 v5, v5, 11, v9
 v_lshl_add_u32 v5, v4, 7, v5
 v_lshrrev_b32 v6, 1, v3
 v_lshl_add_u32 v{vVW}, v6, 4, v5
 v_mov_b32 v{vONE}, 0x3f803f80
 v_mov_b32 v{vONE+1}, 0x3f803f80
 v_mov_b32 v{vONE+2}, 0x3f803f80
 v_mov_b32 v{vONE+3}, 0x3f803f80
 s_mov_b32 s{sC}, {CSCALE:#x}
 s_mov_b32 s{sTH}, {THRESH:#x}
 s_mov_b32 s{sFL}, 0
 s_mov_b32 s{sPL}, 0x05040100
 s_mov_b32 s{sPH}, 0x07060302
 s_mov_b32 s{sQ+2}, 100663296
 s_mov_b32 s{sQ+3}, 0x20000
 s_mov_b32 s{sK+2}, 25165824
 s_mov_b32 s{sK+3}, 0x20000
 s_mov_b32 s{sV+2}, 25165824
 s_mov_b32 s{sV+3}, 0x20000
 s_mov_b32 s{sO+2}, 100663296
 s_mov_b32 s{sO+3}, 0x20000
 s_waitcnt lgkmcnt(0)
 s_mov_b32 s{sQ}, s44
 s_mov_b32 s{sQ+1}, s45
 s_mov_b32 s{sK}, s46
 s_mov_b32 s{sK+1}, s47
 s_mov_b32 s{sV}, s48
 s_mov_b32 s{sV+1}, s49
 s_mov_b32 s{sO}, s50
 s_mov_b32 s{sO+1}, s51
"""
G.main_prog=main_prog; G.setup_text=setup_text; G.staging_v1=lambda: []
if __name__=="__main__":
    out=sys.argv[1] if len(sys.argv)>1 else "k2.s"
    if len(sys.argv)>2 and sys.argv[2]=="stamp": G.STAMP=True
    if len(sys.argv)>3: G.STAMP_AT=[int(x) for x in sys.argv[3].split(",")]
    G.gen(out)
    from build import build
    print(build(out))
```

```python
import sys, struct, math
from sched import *
NAME="standalone__gqa_softmax__near_ridge_kernel"
def f2u(x): return struct.unpack("<I",struct.pack("<f",x))[0]
CSCALE = f2u(math.log2(math.e)/math.sqrt(128.0))
THRESH = f2u(2.0**60)

vO=0; vL=128; vC=144; vS=160; vP=176; vST=184; vLS=216; vQL=220; vONE=236; vT=240
vA0=244; vA1=245; vA2=246; vQO=247; vM0=248; vM1=249
aQ=0; aKR=64; aKF=192; aVF=224
sQ,sK,sV,sO = 8,12,16,20
sW=24; sQB=25; sKV=26; sC=27; sTH=28; sFL=29; sPL=30; sPH=31; sQo=32; sOo=33; sTmp=34
NRES=4
MF="v_mfma_f32_16x16x32_bf16"
LDNT=" nt"; STNT=" nt"

def lds_addr(off):
    b=off>>16
    return (vA0,vA1,vA2)[b], off&0xffff
def k_lds(s,j): return 98304+(s-NRES)*8192+j*1024
def v_lds(s,b): return s*8192+b*1024

def mfma(d,a,b,c,tag=None):
    ct = "0" if c is None else rng("v",c,4)
    return Op(f"{MF} {rng('v',d,4)}, {rng(a[0],a[1],4)}, {rng(b[0],b[1],4)}, {ct}","M",
              rd=R(a[0],a[1],4)+R(b[0],b[1],4), wr=R("v",d,4), rc=[] if c is None else R("v",c,4), tag=tag)
def dsread(f,base,off,tag,extra=()):
    a,o=lds_addr(off)
    return Op(f"ds_read_b128 {rng(f,base,4)}, v{a} offset:{o}","D",rd=[f"v{a}"]+list(extra),wr=R(f,base,4),tag=tag)
def valu(text,rd,wr,kind="V",tag=None): return Op(text,kind,rd=rd,wr=wr,tag=tag)

def kfrag(s,j):
    return ("a", aKR+32*s+4*j) if s<NRES else ("a", aKF+4*j)

def qloads(idx_expr_op, dstf, dst, tag="ql", lat=None):
    ops=[idx_expr_op]
    for ks in range(4):
        ops.append(Op(f"buffer_load_dwordx4 {rng(dstf,dst+4*ks,4)}, v{vQO}, s[{sQ}:{sQ+3}], s{sQo} offen offset:{64*ks}{LDNT}","L",
                      rd=[f"v{vQO}",f"s{sQo}"],wr=R(dstf,dst+4*ks,4),tag=tag,lat=lat))
    return ops

def max_ops(c, tag="max"):
    a,b=vM0,vM1
    return [
      valu(f"v_max3_f32 v{a}, v{c}, v{c+1}, v{c+2}",R("v",c,3),[f"v{a}"],tag=tag),
      valu(f"v_max_f32 v{a}, v{a}, v{c+3}",[f"v{a}",f"v{c+3}"],[f"v{a}"],tag=tag),
      valu(f"v_mov_b32 v{b}, v{a}",[f"v{a}"],[f"v{b}"],tag=tag),
      valu(f"v_permlane16_swap_b32 v{a}, v{b}",[f"v{a}",f"v{b}"],[f"v{a}",f"v{b}"],"P",tag=tag),
      valu(f"v_max_f32 v{a}, v{a}, v{b}",[f"v{a}",f"v{b}"],[f"v{a}"],tag=tag),
      valu(f"v_mov_b32 v{b}, v{a}",[f"v{a}"],[f"v{b}"],tag=tag),
      valu(f"v_permlane32_swap_b32 v{a}, v{b}",[f"v{a}",f"v{b}"],[f"v{a}",f"v{b}"],"P",tag=tag),
      valu(f"v_min_f32 v{a}, -v{a}, -v{b}",[f"v{a}",f"v{b}"],[f"v{a}"],tag=tag),
    ]

vSPA=vONE; vSEL=vL+12; vIDX=vL+10
def acc_of(t): return vL+2*t
def epilogue(src, t, soff_op, flagbit, tag="epi"):
    a=acc_of(t); x=P_X[0]
    pre=[valu(f"v_add_f32 v{x}, v{a}, v{a+1}",[f"v{a}",f"v{a+1}"],[f"v{x}"],tag=tag),
         valu(f"v_mov_b32 v{a}, 0",[],[f"v{a}"],tag=tag),
         valu(f"v_mov_b32 v{a+1}, 0",[],[f"v{a+1}"],tag=tag)]
    ops=[]
    if flagbit is not None:
        ops+=[valu(f"v_cmp_lt_f32 vcc, s{sTH}, v{x}",[f"v{x}",f"s{sTH}"],["vcc"],tag=tag),
              Op("s_cmp_lg_u64 vcc, 0","S",rd=["vcc"],wr=["scc"],tag=tag),
              Op(f"s_cselect_b32 s{sTmp}, {1<<flagbit}, 0","S",rd=["scc"],wr=[f"s{sTmp}"],tag=tag),
              Op(f"s_or_b32 s{sFL}, s{sFL}, s{sTmp}","S",rd=[f"s{sFL}",f"s{sTmp}"],wr=[f"s{sFL}","scc"],tag=tag)]
    ops.append(valu(f"v_rcp_f32 v{x}, v{x}",[f"v{x}"],[f"v{x}"],"E",tag=tag))
    for g in range(1,4):
        ops.append(valu(f"v_mov_b32_dpp v{x}, v{x} row_shl:{4*g} row_mask:{1<<g:#x} bank_mask:0xf",[f"v{x}"],[f"v{x}"],"P",tag=tag))
    ops.append(soff_op)
    for r in range(4):
        for j in range(4):
            u,y=src+8*j+r, src+8*j+4+r
            for z in (u,y):
                ops.append(valu(f"v_mul_f32_dpp v{z}, v{x}, v{z} row_newbcast:{r} row_mask:0xf bank_mask:0xf",[f"v{z}",f"v{x}"],[f"v{z}"],"P",tag=tag))
            ops.append(valu(f"v_cvt_pk_bf16_f32 v{vT+j}, v{u}, v{y}",[f"v{u}",f"v{y}"],[f"v{vT+j}"],tag=tag))
        ops.append(Op(f"buffer_store_dwordx4 {rng('v',vT,4)}, v{vA0}, s[{sO}:{sO+3}], s{sOo} offen offset:{1024*r}{STNT}","T",
                      rd=R("v",vT,4)+[f"v{vA0}",f"s{sOo}"],tag=tag,cost=20))
    return pre,ops
P_X=[vLS]
def lsum_dense(t,pb):
    a=acc_of(t)
    return mfma(a,("v",vSEL),("v",pb),a,tag="l")
def lsum_pair(k):
    a=vL+4*k
    o=Op(f"v_smfmac_f32_16x16x64_bf16 {rng('v',a,4)}, {rng('v',vSPA,4)}, {rng('v',vP,8)}, v{vIDX}","M",
         rd=R("v",vSPA,4)+R("v",vP,8)+[f"v{vIDX}"],wr=R("v",a,4),rc=R("v",a,4),tag="l",cost=12)
    return o

def sm_ops(sb,pb,tag="sm"):
    ops=[]
    for j in range(4):
        for e in range(2):
            r=sb+2*j+e
            ops.append(valu(f"v_exp_f32 v{r}, v{r}",[f"v{r}"],[f"v{r}"],"E",tag=tag))
        ops.append(valu(f"v_cvt_pk_bf16_f32 v{pb+j}, v{sb+2*j}, v{sb+2*j+1}",R("v",sb+2*j,2),[f"v{pb+j}"],tag=tag))
    return ops

def soff(reg, idx): return Op(f"s_add_u32 s{reg}, s{sQB}, {idx*4096}","S",rd=[f"s{sQB}"],wr=[f"s{reg}","scc"],tag="soff")

def main_prog():
    OFF=[0,3,6,9]
    units=[]
    for tau in range(12*6+OFF[3]):
        for t in range(4):
            if tau<12: p,k=0,tau
            else:
                x=tau-OFF[t]
                if x<12 or x>=72: continue
                p,k=x//12,x%12
            units.append(dict(t=t,p=p,tau=tau,s=tau%12,first=(k==0),last=(k==11)))
    nU=len(units)
    for i,u in enumerate(units):
        u["i"]=i; u["newstep"]= (i==0 or units[i-1]["tau"]!=u["tau"])
    land={}
    for p in range(1,6):
        for t in range(4): land[(t,p)]=("v",vQL)
    land[(1,1)]=("v",vST); land[(2,1)]=None; land[(3,1)]=None
    ql_order=[(t,p) for p in range(1,6) for t in range(4) if land[(t,p)]==("v",vQL)]
    prog=[]
    def emit_qload(t,p):
        l=land[(t,p)]
        if l is None: prog.extend(qloads(soff(sQo,4*p+t),"a",aQ+16*t))
        else: prog.extend(qloads(soff(sQo,4*p+t),l[0],l[1]))
    emit_qload(0,1); emit_qload(1,1)
    def chain(u,kb,d,c):
        for ks in range(4):
            prog.append(mfma(d,kfrag(u["s"],4*kb+ks),("a",aQ+16*u["t"]+4*ks), c if ks==0 else d, tag="qk"))
    def kloads(u):
        if u["newstep"] and u["s"]>=NRES and not u.get("kl"):
            u["kl"]=True
            for j in range(8): prog.append(dsread("a",aKF+4*j,k_lds(u["s"],j),"kf"))
    def hoist(u):
        c=vC+4*u["t"]; sb=vS+8*(u["i"]%2)
        chain(u,0,c,None)
        u["post"]=max_ops(c)
        for r in range(4): u["post"].append(valu(f"v_add_f32 v{sb+r}, v{c+r}, v{vM0}",[f"v{c+r}",f"v{vM0}"],[f"v{sb+r}"],tag="max"))
        for r in range(4): u["post"].append(valu(f"v_mov_b32 v{c+r}, v{vM0}",[f"v{vM0}"],[f"v{c+r}"],tag="max"))
        u["hoisted"]=True
    for t in range(4): hoist(units[t])
    for i in range(-1,nU):
        nx=units[i+1] if i+1<nU else None
        n2=units[i+2] if i+2<nU else None
        if nx: kloads(nx)
        if n2 and n2["first"] and not n2.get("hoisted"):
            assert n2["s"]<NRES or n2["tau"]==nx["tau"], n2
            hoist(n2)
        if nx:
            c=vC+4*nx["t"]; sb=vS+8*(nx["i"]%2)
            if nx["first"]:
                prog.extend(nx["post"])
                chain(nx,1,sb+4,c)
            else:
                chain(nx,0,sb,c); chain(nx,1,sb+4,c)
            if nx["last"] and nx["p"]<5:
                t,p=nx["t"],nx["p"]+1; l=land[(t,p)]
                if l is None: emit_qload(t,p)
                else:
                    for r in range(16):
                        prog.append(valu(f"v_accvgpr_write_b32 a{aQ+16*t+r}, v{l[1]+r}",[f"v{l[1]+r}"],[f"a{aQ+16*t+r}"],tag="qcp"))
                    if l==("v",vQL):
                        k=ql_order.index((t,p))
                        if k+1<len(ql_order): emit_qload(*ql_order[k+1])
        if i>=0:
            u=units[i]; t=u["t"]; pb=vP+4*(i%2)
            if u["newstep"]:
                for b in range(8): prog.append(dsread("a",aVF+4*b,v_lds(u["s"],b),"vf"))
            stage = u["last"] and 1<=u["p"]<5
            lo=vL+4*t
            prog.append(mfma(vLS if stage else lo,("v",pb),("v",vONE),None if u["first"] else lo,tag="l"))
            for b in range(8):
                o=vO+32*t+4*b
                prog.append(mfma(vST+4*b if stage else o,("v",pb),("a",aVF+4*b),None if u["first"] else o,tag="pv"))
            if u["last"]:
                idx=4*u["p"]+t
                prog.extend(epilogue(vST if stage else vO+32*t, vLS if stage else lo, soff(sOo,idx), idx))
        if nx:
            prog.extend(sm_ops(vS+8*(nx["i"]%2), vP+4*(nx["i"]%2)))
    return prog

def S(t,rd=(),wr=()): return Op(t,"S",rd=rd,wr=wr)
def Bar(t): return Op(t,"B")

def setup_text():
    return f"""
 s_cmp_ge_u32 s2, 256
 s_cbranch_scc1 L_end
 s_load_dwordx4 s[36:39], s[0:1], 0
 s_load_dwordx4 s[40:43], s[0:1], 16
 s_getpc_b64 s[44:45]
 v_lshlrev_b32 v1, 7, v0
 global_load_dword v250, v1, s[44:45]
 v_add_u32 v1, 0x8000, v1
 global_load_dword v251, v1, s[44:45]
 v_add_u32 v1, 0x8000, v1
 global_load_dword v252, v1, s[44:45]
 v_and_b32 v1, 63, v0
 v_lshrrev_b32 v2, 6, v0
 v_lshlrev_b32 v{vA0}, 4, v1
 v_readfirstlane_b32 s{sW}, v2
 v_add_u32 v{vA1}, 0x10000, v{vA0}
 v_add_u32 v{vA2}, 0x20000, v{vA0}
 v_and_b32 v3, 15, v1
 v_lshrrev_b32 v4, 4, v1
 v_and_b32 v5, 3, v3
 v_lshrrev_b32 v6, 2, v3
 v_lshl_add_u32 v5, v5, 2, v6
 v_lshlrev_b32 v5, 8, v5
 v_lshl_add_u32 v{vQO}, v4, 4, v5
 v_lshlrev_b32 v5, 8, v3
 v_lshl_add_u32 v253, v4, 4, v5
 v_lshlrev_b32 v5, 10, v4
 v_lshl_add_u32 v254, v3, 4, v5
 v_lshlrev_b32 v5, 13, v2
 v_add_u32 v255, v5, v{vA0}
 v_mov_b32 v{vONE}, 0x3f803f80
 v_mov_b32 v{vONE+1}, 0x3f803f80
 v_mov_b32 v{vONE+2}, 0x3f803f80
 v_mov_b32 v{vONE+3}, 0x3f803f80
 s_mov_b32 s{sC}, {CSCALE:#x}
 s_mov_b32 s{sTH}, {THRESH:#x}
 s_mov_b32 s{sFL}, 0
 s_mov_b32 s{sPL}, 0x05040100
 s_mov_b32 s{sPH}, 0x07060302
 s_mul_i32 s{sQB}, s2, 393216
 s_mul_i32 s{sKV}, s{sW}, 98304
 s_add_u32 s{sQB}, s{sQB}, s{sKV}
 s_mul_i32 s{sKV}, s2, 98304
 s_lshl_b32 s{sTmp}, s{sW}, 13
 s_add_u32 s{sKV}, s{sKV}, s{sTmp}
 s_waitcnt lgkmcnt(0)
 s_mov_b32 s{sQ}, s36
 s_mov_b32 s{sQ+1}, s37
 s_mov_b32 s{sQ+2}, 100663296
 s_mov_b32 s{sQ+3}, 0x20000
 s_mov_b32 s{sK}, s38
 s_mov_b32 s{sK+1}, s39
 s_mov_b32 s{sK+2}, 25165824
 s_mov_b32 s{sK+3}, 0x20000
 s_mov_b32 s{sV}, s40
 s_mov_b32 s{sV+1}, s41
 s_mov_b32 s{sV+2}, 25165824
 s_mov_b32 s{sV+3}, 0x20000
 s_mov_b32 s{sO}, s42
 s_mov_b32 s{sO+1}, s43
 s_mov_b32 s{sO+2}, 100663296
 s_mov_b32 s{sO+3}, 0x20000
"""

def staging_v1():
    ops=[]
    vW,vW1,vW2=255,192,193
    ops.append(valu(f"v_add_u32 v{vW1}, 0x10000, v{vW}",[f"v{vW}"],[f"v{vW1}"]))
    ops.append(valu(f"v_add_u32 v{vW2}, 0x20000, v{vW}",[f"v{vW}"],[f"v{vW2}"]))
    so=[46+i for i in range(6)]
    for g in range(3):
        for h in range(2):
            ops.append(S(f"s_add_u32 s{so[2*g+h]}, s{sKV}, {g*32768+h*4096}",wr=[f"s{so[2*g+h]}"]))
    def kload(g):
        for j in range(8):
            kb,ks=j//4,j%4; d=32*g+4*j
            ops.append(Op(f"buffer_load_dwordx4 {rng('v',d,4)}, v253, s[{sK}:{sK+3}], s{so[2*g+kb]} offen offset:{64*ks}{LDNT}","L",wr=R("v",d,4)))
    def vload(g):
        for i in range(8):
            d=96+32*g+4*i
            ops.append(Op(f"buffer_load_dwordx4 {rng('v',d,4)}, v254, s[{sV}:{sV+3}], s{so[2*g+i//4]} offen offset:{256*(i%4)}{LDNT}","L",wr=R("v",d,4)))
    kload(0); kload(1); kload(2)
    vload(0); vload(1)
    for t in range(4):
        ops.extend(qloads(soff(sQo,t),"a",aQ+16*t))
    def kproc(g):
        base,off=((vW1,0),(vW1,32768),(vW2,0))[g]
        for j in range(8):
            d=32*g+4*j
            for e in range(4):
                x=d+e; t0=194+2*(e%2); t1=t0+1
                ops.append(valu(f"v_lshlrev_b32 v{t0}, 16, v{x}",[f"v{x}"],[f"v{t0}"]))
                ops.append(valu(f"v_and_b32 v{t1}, 0xffff0000, v{x}",[f"v{x}"],[f"v{t1}"]))
                ops.append(valu(f"v_mul_f32 v{t0}, s{sC}, v{t0}",[f"v{t0}"],[f"v{t0}"]))
                ops.append(valu(f"v_mul_f32 v{t1}, s{sC}, v{t1}",[f"v{t1}"],[f"v{t1}"]))
                ops.append(valu(f"v_cvt_pk_bf16_f32 v{x}, v{t0}, v{t1}",[f"v{t0}",f"v{t1}"],[f"v{x}"]))
            ops.append(Op(f"ds_write_b128 v{base}, {rng('v',d,4)} offset:{off+1024*j}","W",rd=R("v",d,4)+[f"v{base}"]))
    def vproc(g):
        base,off=((vW,0),(vW,32768),(vW1,0))[g]
        r0=96+32*g
        for b in range(8):
            t=200+4*(b%2)
            for q in range(4):
                lo=r0+4*(2*q)+b//2; hi=r0+4*(2*q+1)+b//2
                ops.append(valu(f"v_perm_b32 v{t+q}, v{hi}, v{lo}, s{sPH if b%2 else sPL}",[f"v{hi}",f"v{lo}"],[f"v{t+q}"]))
            ops.append(Op(f"ds_write_b128 v{base}, {rng('v',t,4)} offset:{off+1024*b}","W",rd=R("v",t,4)+[f"v{base}"]))
    kproc(0)
    vload(2)
    kproc(1); kproc(2)
    ops.append(Bar("s_waitcnt lgkmcnt(0)")); ops.append(Bar("s_barrier"))
    for s in range(NRES):
        for j in range(8): ops.append(dsread("a",aKR+32*s+4*j,(8+s)*8192+1024*j,"kr"))
    vproc(0); vproc(1)
    ops.append(Bar("s_waitcnt lgkmcnt(0)")); ops.append(Bar("s_barrier"))
    vproc(2)
    ops.append(Bar("s_waitcnt vmcnt(0) lgkmcnt(0)")); ops.append(Bar("s_barrier"))
    return ops

def slow_path():
    ops=[]
    ops.append(S(f"s_lshl_b32 s{sTmp}, s35, 12",wr=[f"s{sTmp}"]))
    ops.extend(qloads(S(f"s_add_u32 s{sQo}, s{sQB}, s{sTmp}",wr=[f"s{sQo}"]),"a",aQ))
    c=vC
    def kl(s):
        if s>=NRES:
            for j in range(8): ops.append(dsread("a",aKF+4*j,k_lds(s,j),"kf"))
    def chain(s,kb,d,cc):
        for ks in range(4): ops.append(mfma(d,kfrag(s,4*kb+ks),("a",aQ+4*ks),cc if ks==0 else d))
    for s in range(12):
        kl(s); chain(s,0,vS,None); chain(s,1,vS+4,None)
        for r in range(4):
            if s==0: ops.append(valu(f"v_max_f32 v{c+r}, v{vS+r}, v{vS+4+r}",[f"v{vS+r}",f"v{vS+4+r}"],[f"v{c+r}"]))
            else: ops.append(valu(f"v_max3_f32 v{c+r}, v{c+r}, v{vS+r}, v{vS+4+r}",[f"v{c+r}",f"v{vS+r}",f"v{vS+4+r}"],[f"v{c+r}"]))
    ops.extend(max_ops(c))
    for r in range(4): ops.append(valu(f"v_mov_b32 v{c+r}, v{vM0}",[f"v{vM0}"],[f"v{c+r}"]))
    for s in range(12):
        kl(s)
        for b in range(8): ops.append(dsread("a",aVF+4*b,v_lds(s,b),"vf"))
        chain(s,0,vS,c); chain(s,1,vS+4,c)
        ops.extend(sm_ops(vS,vP))
        ops.append(lsum_dense(0,vP))
        for b in range(8): ops.append(mfma(vO+4*b,("v",vP),("a",aVF+4*b),None if s==0 else vO+4*b))
    P_X[0]=vLS
    e0,e1=epilogue(vO,0,S(f"s_mov_b32 s{sOo}, s{sQo}",rd=[f"s{sQo}"],wr=[f"s{sOo}"]),None)
    ops.extend(e0+e1)
    return ops

HEADER = open("standalone__gqa_softmax__near_ridge.s.ref").read().split("; @launch")[0]

STAMP=False
HOOK=lambda mt: mt
POST=lambda path: None
STAMP_AT=408
ABL=lambda o: False
def stamp(k):
    if not STAMP: return []
    return [f"s_memtime s[60:61]",f"s_memrealtime s[62:63]","s_waitcnt lgkmcnt(0)",f"s_mov_b32 s{64+2*k}, s60",f"s_mov_b32 s{65+2*k}, s62"]
def stamp_store(n):
    if not STAMP: return ""
    t=" s_waitcnt vmcnt(0)\n"+"\n".join(" "+x for x in stamp(n-1))+"\n"
    t+=" s_load_dwordx2 s[56:57], s[0:1], 40\n s_waitcnt lgkmcnt(0)\n s_mov_b32 s58, 402653184\n s_mov_b32 s59, 0x20000\n"
    t+=f" s_lshl_b32 s60, s2, 2\n s_add_u32 s60, s60, s{sW}\n s_lshl_b32 s60, s60, 7\n v_mov_b32 v1, s60\n"
    for k in range(2*n):
        t+=f" v_mov_b32 v2, s{64+k}\n buffer_store_dword v2, v1, s[56:59], 0 offen offset:{4*k}\n"
    return t
def insert_stamps(mt, every, k0):
    if not STAMP: return mt,k0
    out=[];c=0;k=k0
    for x in mt:
        if x.startswith("v_mfma") or x.startswith("v_smfmac"):
            c+=1
            if (c in every if isinstance(every,(list,tuple)) else c%every==0):
                out+=["s_waitcnt lgkmcnt(0)"]+stamp(k); k+=1
        out.append(x)
    return out,k
def gen(path):
    st,n1=finalize(staging_v1(),False)
    mp=schedule(main_prog())
    mp=[o for o in mp if not ABL(o)]
    mt,n2=finalize(mp)
    sp,n3=finalize(slow_path(),False)
    print("nops",n1,n2,n3,"instrs",len(st),len(mt),len(sp))
    s=HEADER+"; @launch grid=(256,1,1) block=(256,1,1) lds=163840\n"
    s+=f""".amdgcn_target "amdgcn-amd-amdhsa--gfx950"
.text
.globl {NAME}
.p2align 12
.p2align 8
.type {NAME},@function
{NAME}:"""
    mt,nk=insert_stamps(mt,STAMP_AT,2)
    mt=HOOK(mt)
    s+="\n"+"\n".join(" "+x for x in stamp(0))
    s+=setup_text()
    s+="\n".join(" "+x for x in st)+"\n"
    s+="\n".join(" "+x for x in stamp(1))+"\n"
    s+="\n".join((x if x.endswith(":") else " "+x) for x in mt)+"\n"
    s+=stamp_store(nk+1)
    s+=f"""L_slow:
 s_cmp_eq_u32 s{sFL}, 0
 s_cbranch_scc1 L_end
 s_waitcnt vmcnt(0) lgkmcnt(0)
 s_nop 15
 s_ff1_i32_b32 s35, s{sFL}
 s_bitset0_b32 s{sFL}, s35
"""
    s+="\n".join(" "+x for x in sp)+"\n"
    s+=""" s_branch L_slow
L_end:
 s_endpgm
.fill 4096, 4, 0xbf800000
.section .rodata,"a"
.p2align 6
.amdhsa_kernel %s
  .amdhsa_next_free_vgpr 512
  .amdhsa_next_free_sgpr 100
  .amdhsa_accum_offset 256
  .amdhsa_group_segment_fixed_size 0
  .amdhsa_kernarg_size 48
  .amdhsa_user_sgpr_count 2
  .amdhsa_user_sgpr_kernarg_segment_ptr 1
  .amdhsa_system_sgpr_workgroup_id_x 1
.end_amdhsa_kernel
""" % NAME
    open(path,"w").write(s)
    POST(path)
if __name__=="__main__":
    out=sys.argv[1] if len(sys.argv)>1 else "k1.s"
    if len(sys.argv)>2 and sys.argv[2]=="stamp": STAMP=True
    gen(out)
    from build import build
    print(build(out))
```

```python
import re, heapq

def R(f, lo, n=1):
    return [f"{f}{i}" for i in range(lo, lo+n)]
def rng(f, lo, n):
    return f"{f}{lo}" if n == 1 else f"{f}[{lo}:{lo+n-1}]"

class Op:
    __slots__ = ("id","text","kind","rd","wr","rc","cost","preds","succs","dl","hd","pos","midx","np","earliest","tag","lat","due","hard")
    def __init__(s, text, kind, rd=(), wr=(), rc=(), cost=None, tag=None, earliest=None, lat=None, due=None, hard=None):
        s.text=text; s.kind=kind; s.rd=list(rd); s.wr=list(wr); s.rc=list(rc)
        s.cost = cost if cost is not None else {"M":8,"V":4,"P":4,"E":8,"D":4,"W":4,"L":8,"T":8,"S":4,"X":8,"B":4}[kind]
        s.preds=[]; s.succs=[]; s.pos=None; s.midx=None; s.tag=tag; s.earliest=earliest; s.lat=lat; s.due=due; s.hard=hard
VALU = ("V","P","E")
ASYNC_DS=("D",); ASYNC_VM=("L",)

def req_ws(p, c, dep, reg):
    if p.kind=="M":
        if dep in ("RAW","WAW"):
            if c.kind=="M":
                if dep=="RAW":
                    if reg in c.rc and reg not in c.rd:
                        return 0 if c.rc==p.wr else 6
                    return 8
                return 0
            return 8
        if dep=="WAR":
            if reg in p.rc and c.kind!="M": return 3
            return 0
    if p.kind in VALU:
        if dep=="RAW":
            if c.kind=="M": return 2
            if c.kind=="P": return 2
            if p.kind=="E" and c.kind in ("V","P"): return 1
            if reg.startswith("s") or reg=="vcc":
                if c.kind in ("L","T","X"): return 5
                if c.kind in VALU: return 2
                return 1
        return 0
    if p.kind in ("T","W") and dep=="WAR":
        return 2
    if p.kind=="S" and dep=="RAW" and reg=="m0": return 1
    return 0

def build_deps(prog):
    lastw={}; readers={}
    for i,o in enumerate(prog):
        o.id=i; o.preds=[]; o.succs=[]
    for o in prog:
        deps={}
        def add(p,dep,reg):
            if p is o: return
            deps.setdefault(p.id,[p,[]])[1].append((dep,reg))
        for r in o.rd+o.rc:
            if r in lastw: add(lastw[r],"RAW",r)
        for r in o.wr:
            if r in lastw: add(lastw[r],"WAW",r)
            for q in readers.get(r,()): add(q,"WAR",r)
        for r in o.rd+o.rc: readers.setdefault(r,[]).append(o)
        for r in o.wr:
            lastw[r]=o; readers[r]=[]
        for p,lst in deps.values():
            ws=max(req_ws(p,o,d,r) for d,r in lst)
            raw=any(d=="RAW" and r[0]!="@" for d,r in lst)
            o.preds.append((p,ws,raw)); p.succs.append((o,ws,raw))

RANK={"B":0,"S":0,"D":1,"W":1,"L":1,"T":1,"X":1,"V":2,"P":2,"E":2}
DS_LAT=9
VM_LAT=150
CAP=8
DS_AGE=7
VM_AGE=120
L_SPACE=4
L_PRIO=100
W_LAT=9
W_SPACE=4
V_SPACE=1
VM_EARLY=200
L_WINDOW=60
LATE_OVERFLOW=True

def schedule(prog, verbose=True):
    build_deps(prog)
    ms=[o for o in prog if o.kind=="M"]
    for i,m in enumerate(ms): m.midx=i
    N=len(ms); INF=10**9
    def soft(p,c,ws,raw):
        if raw and p.kind=="D": return DS_LAT
        if raw and p.kind in "LX": return p.lat if p.lat is not None else VM_LAT
        if raw and p.kind=="W": return W_LAT
        if c.kind=="M": return 2 if ws else 0
        if RANK[p.kind]>RANK[c.kind]: return 1
        return 1 if (ws or p.kind=="E" or c.kind=="E") else 0
    for o in reversed(prog):
        if o.kind=="M": continue
        dl=INF; hd=INF
        for c,ws,raw in o.succs:
            if c.kind=="M":
                dl=min(dl,c.midx-1-soft(o,c,ws,raw)); hd=min(hd,c.midx-1)
            else:
                dl=min(dl,c.dl-soft(o,c,ws,raw)); hd=min(hd,c.hd)
        if o.due is not None:
            dl=min(dl,o.due)
            if o.due<0: hd=-1
        if o.hard is not None:
            dl=min(dl,o.hard); hd=min(hd,o.hard)
        o.dl=dl; o.hd=hd
    for o in prog: o.np=len(o.preds); o.pos=None
    ready=[o for o in prog if o.np==0 and o.kind!="M"]
    out=[]
    gapof={}
    cyc=0; over=0; stats={}; hist={}
    def release(o):
        for c,_,_ in o.succs:
            c.np-=1
            if c.np==0 and c.kind!="M": ready.append(c)
    lgaps=[]; lastw_gap=[-100]; lastv_gap=[-100]
    byhd={}
    for o in prog:
        if o.kind!="M": byhd.setdefault(o.hd,[]).append(o)
    for g in range(-1,N):
        if g>=0:
            m=ms[g]; assert m.np==0, (m.text,[p.text for p,_,_ in m.preds if p.pos is None])
            m.pos=len(out); out.append(m); gapof[m.id]=g; release(m)
        cur=[]
        used=(ms[g].cost-8 if g>=0 else 0); sfree=True; late=[]
        base=len(out)
        def place(o):
            nonlocal used,sfree
            ready.remove(o); cur.append(o); gapof[o.id]=g; o.pos=-2
            if o.kind=="W": lastw_gap[0]=g
            if o.kind=="L": lgaps.append(g)
            if o.kind in "LTX": lastv_gap[0]=g
            if o.kind=="S" and sfree: sfree=False
            else: used+=o.cost
            release(o)
        def ok(o):
            if o.earliest is not None and g<o.earliest: return False
            if o.kind=="L":
                if g<o.dl-VM_EARLY: return False
                if lgaps and g-lgaps[-1]<L_SPACE: return False
                if len(lgaps)>=4 and g-lgaps[-4]<L_WINDOW and g<o.dl-8: return False
            if o.kind=="W" and g-lastw_gap[0]<W_SPACE: return False
            if o.kind in "LT" and g-lastv_gap[0]<V_SPACE: return False
            for p,ws,raw in o.preds:
                pg=gapof[p.id]
                if p.kind=="M":
                    if ws and (base-p.pos-1+sum(1 for x in cur if RANK[x.kind]<=RANK[o.kind]))<ws: return False
                else:
                    if pg==g:
                        if RANK[p.kind]>RANK[o.kind] or ws or (raw and p.kind in "DLXW"): return False
                    else:
                        if raw and p.kind=="D" and g-pg<DS_LAT: return False
                        if raw and p.kind=="W" and g-pg<W_LAT: return False
                        if raw and p.kind in "LX" and g-pg<(p.lat if p.lat is not None else VM_LAT): return False
                        if ws and (base-p.pos-1)<ws: return False
            return True
        last = (g==N-1)
        while True:
            cands=[o for o in ready if ((o.kind=="S" and sfree) or used+o.cost<=CAP or used==0) and ok(o)]
            if g<0: break
            if not cands: break
            o=min(cands,key=lambda x:(x.kind!="W",x.dl-(L_PRIO if x.kind=="L" else 0),x.id)); place(o)
        while g>=0 and LATE_OVERFLOW:
            cands=[o for o in ready if o.dl<=g and ok(o)]
            if not cands: break
            o=min(cands,key=lambda x:(x.dl,x.id)); place(o); late.append(o)
        cur.sort(key=lambda x:RANK[x.kind])
        forced=[]
        while True:
            f=[o for o in ready if o.hd<=g or last]
            if not f: break
            o=min(f,key=lambda x:x.id)
            ready.remove(o); forced.append(o); gapof[o.id]=g; used+=o.cost; release(o)
        for o in cur+forced:
            o.pos=len(out); out.append(o)
        if g>=0:
            c=max(16,8+used); cyc+=c
            if c>16 and not last:
                over+=c-16
                hist[g//68]=hist.get(g//68,0)+c-16
                for o in forced+late: stats[o.tag]=stats.get(o.tag,0)+o.cost
    assert all(o.pos is not None for o in prog)
    if verbose: print(f"sched: {N} mfma, est cycles {cyc}, overflow {over}, forced by tag {stats}\n  overflow per 68 mfma: {hist}")
    return out

def finalize(lin, after_mfma_waits=True):
    ins={}
    dsq=[]; vmq=[]
    ds_done=0; vm_done=0
    pend={}
    lastm=-1
    mc=[0]*(len(lin)+1)
    for i,o in enumerate(lin): mc[i+1]=mc[i]+(o.kind=="M")
    for i,o in enumerate(lin):
        need_ds=-1; need_vm=-1
        for r in o.rd+o.rc+o.wr:
            if r in pend:
                k,s=pend[r]
                if k=="ds" and s>=ds_done: need_ds=max(need_ds,s)
                if k=="vm" and s>=vm_done: need_vm=max(need_vm,s)
        for k,need,q in (("ds",need_ds,dsq),("vm",need_vm,vmq)):
            if need<0: continue
            p=i
            if after_mfma_waits and lastm>=0 and q[need]<lastm: p=lastm+1
            if after_mfma_waits:
                age=DS_AGE if k=="ds" else VM_AGE
                while need+1<len(q) and q[need+1]<p and mc[p]-mc[q[need+1]]>=age and lin[q[need+1]].kind!="T": need+=1
            n=sum(1 for x in q[need+1:] if x<p)
            n=min(n,15 if k=="ds" else 63)
            w=ins.setdefault(p,[None,None]); j=1 if k=="ds" else 0
            w[j]=n if w[j] is None else min(w[j],n)
            if k=="ds": ds_done=need+1
            else: vm_done=need+1
        if o.kind=="B":
            if "lgkmcnt(0)" in o.text: ds_done=len(dsq)
            if "vmcnt(0)" in o.text: vm_done=len(vmq)
        if o.kind in ("D","W"):
            dsq.append(i)
            for r in o.wr:
                if r[0]!="@": pend[r]=("ds",len(dsq)-1)
        if o.kind in ("L","T","X"):
            vmq.append(i)
            if o.kind in ("L","X"):
                for r in o.wr:
                    if r[0]!="@": pend[r]=("vm",len(vmq)-1)
        if o.kind=="M": lastm=i
    lin2=[]
    for i,o in enumerate(lin):
        if i in ins:
            vm,lg=ins[i]
            t="s_waitcnt"+(f" vmcnt({vm})" if vm is not None else "")+(f" lgkmcnt({lg})" if lg is not None else "")
            lin2.append(Op(t,"S"))
        lin2.append(o)
    out=[]; cnt=0
    lastw={}; readers={}
    nnop=0
    for o in lin2:
        need=0
        for r in o.rd+o.rc:
            if r in lastw:
                p,pp=lastw[r]; need=max(need,req_ws(p,o,"RAW",r)-(cnt-pp-1))
        for r in o.wr:
            if r in lastw:
                p,pp=lastw[r]; need=max(need,req_ws(p,o,"WAW",r)-(cnt-pp-1))
            for p,pp in readers.get(r,()):
                need=max(need,req_ws(p,o,"WAR",r)-(cnt-pp-1))
        if need>0:
            out.append(f"s_nop {need-1}"); cnt+=need; nnop+=1
        out.append(o.text)
        for r in o.rd+o.rc:
            l=readers.setdefault(r,[]); l.append((o,cnt))
            if len(l)>4: del l[0]
        for r in o.wr:
            lastw[r]=(o,cnt); readers[r]=[]
        cnt+=1
    return out,nnop
```

```python
import sys
import numpy as np
import gen as G
from gen import *
vB0=250; vB1=251; vB2=252
vKD=245; vVD=246
vKF=253; vVR=254; vVW=255
sKb=36; sVb=37; sLw=38; sD0=39; sD1=40; sD2=41; sD3=42
def lds_addr(off): return (vB0,vB1,vB2)[off>>16], off&0xffff
G.lds_addr=lds_addr
def k_lds(s,j): return 65536+s*8192+j*512
def v_lds(s,b): return s*8192+b*512
G.k_lds=k_lds; G.v_lds=v_lds

P=dict(order=["K0","Q0","V0","Q1","K1","V1","Q2","Q3","K2","V2","K3","V3","K4","V4","K5","V5"],
       head=[(0,0),(0,1),(1,0),(1,1),(0,2),(1,2),(0,3),(1,3),(2,0),(2,1),(2,2),(2,3),(3,0),(3,1),(3,2),(3,3)],
       drain=[(1,0),(2,0),(3,0)],
       npre=10, ahead=6, chunk=30, xs=[12,28,63], xt=[0,50,50+35*11], early_blocks=8,
       seq=[("fv0",0,8,10),("fk1",30,40,50),("fv1",50,60,66),("fk2",0,170,225),("fv2",0,215,250),
            ("fk3",0,262,355),("fv3",0,345,386),("fk4",0,398,491),("fv4",0,481,522),("fk5",0,534,627),("fv5",0,617,658)], merge=2,
       warm=[('x',6,list(range(1,13))),('m',2000,list(range(13,30)))], dma_lat=45, OFF=[0,3,6,9], wcost=20)
QREG={0:65536+5*16384,1:65536+4*16384,2:3*16384,3:65536+3*16384}
QHOST={"K5":0,"K4":1,"V3":2,"K3":3}
vQD=vO+120; vQR=vO+121; vQR2=vO+122

def dma_ops(blk):
    kind,g=blk[0],int(blk[1]); bi=P["order"].index(blk)
    groups=[]
    extra=[]
    if kind=="V" and g>=4: extra+=[f"pubV{g-4}"]
    if blk in QHOST: extra+=R("a",aQ+16*QHOST[blk],16)
    for a in range(4):
        ops=[]
        if kind=="Q":
            srd,vo,reg=sQ,vQD,QREG[g]; imm=(a//2)*512+(a%2)*128; so=sQo
            if a==0: ops.append(soff(sQo,g))
        else:
            sb = sKb if kind=="K" else sVb
            s0,s1 = (sD0,sD1) if kind=="K" else (sD2,sD3)
            srd = sK if kind=="K" else sV
            vo = vKD if kind=="K" else vVD
            reg = (65536 if kind=="K" else 0)+g*16384
            imm=(a%2)*(128 if kind=="K" else 512); so=(s0,s1)[a//2]
            if a%2==0: ops.append(Op(f"s_add_u32 s{so}, s{sb}, {g*16384+(a//2)*4096}","S",rd=[f"s{sb}"],wr=[f"s{so}","scc"],tag="dma"))
        ops.append(Op(f"s_add_u32 m0, s{sLw}, {reg+a*1024-imm}","S",rd=[f"s{sLw}"],wr=["m0","scc"],tag="dma"))
        ops.append(Op(f"buffer_load_dwordx4 v{vo}, s[{srd}:{srd+3}], s{so} offen offset:{imm}{LDNT} lds","X",
                      rd=[f"v{vo}","m0",f"s{so}"]+extra,wr=[f"raw{blk}_{a}",f"@x{4*bi+a}"],tag="dma",lat=(0 if bi<P["early_blocks"] else P["dma_lat"])))
        groups.append(ops)
    return groups
def ahead(blk):
    if P['order'].index(blk)>=P["early_blocks"]: return []
    return [f"@x{min(4*P['order'].index(blk)+3+P['ahead'],63)}"]
def q0_reads(t):
    ops=[]
    reg=QREG[t]; v=vQR if reg<65536 else vQR2
    off=reg if reg<65536 else reg-98304
    for ks in range(4):
        d=aQ+16*t+4*ks
        ops.append(Op(f"ds_read_b128 {rng('a',d,4)}, v{v} offset:{off+512*ks}","D",rd=[f"v{v}",f"rawQ{t}_{ks//2}",f"rawQ{t}_{2+ks//2}"]+ahead(f"Q{t}"),wr=R("a",d,4),tag="q0"))
    return ops

def fix_k(g,earliest=None):
    ops=[]
    if g==4: ops.append(valu(f"v_add_u32 v{vKF}, 0x10000, v{vKF}",[f"v{vKF}"],[f"v{vKF}"],tag="fix"))
    off=(g%4)*16384
    for a in range(4):
        d=vST+4*a
        ops.append(Op(f"ds_read_b128 {rng('v',d,4)}, v{vKF} offset:{off+1024*a}","D",rd=[f"v{vKF}",f"rawK{g}_{a}"]+ahead(f"K{g}"),wr=R("v",d,4),tag="fix",earliest=earliest))
    for a in range(4):
        d=vST+4*a
        for e in range(4):
            x=d+e; t0=vT+2*(e%2); t1=t0+1
            ops.append(valu(f"v_lshlrev_b32 v{t0}, 16, v{x}",[f"v{x}"],[f"v{t0}"],tag="fix"))
            ops.append(valu(f"v_and_b32 v{t1}, 0xffff0000, v{x}",[f"v{x}"],[f"v{t1}"],tag="fix"))
            ops.append(valu(f"v_mul_f32 v{t0}, s{sC}, v{t0}",[f"v{t0}"],[f"v{t0}"],tag="fix"))
            ops.append(valu(f"v_mul_f32 v{t1}, s{sC}, v{t1}",[f"v{t1}"],[f"v{t1}"],tag="fix"))
            ops.append(valu(f"v_cvt_pk_bf16_f32 v{x}, v{t0}, v{t1}",[f"v{t0}",f"v{t1}"],[f"v{x}"],tag="fix"))
        ops.append(Op(f"ds_write_b128 v{vKF}, {rng('v',d,4)} offset:{off+1024*a}","W",rd=R("v",d,4)+[f"v{vKF}"],wr=[f"fixK{g}_{a}"],tag="fix",cost=P["wcost"]))
    return ops
def fix_v(g,earliest=None):
    ops=[]
    if g==4:
        ops.append(valu(f"v_add_u32 v{vVR}, 0x10000, v{vVR}",[f"v{vVR}"],[f"v{vVR}"],tag="fix"))
        ops.append(valu(f"v_add_u32 v{vVW}, 0x10000, v{vVW}",[f"v{vVW}"],[f"v{vVW}"],tag="fix"))
    off=(g%4)*16384
    for i in range(8):
        d=vST+16+2*i
        ops.append(Op(f"ds_read_b64 {rng('v',d,2)}, v{vVR} offset:{off+512*i}","D",rd=[f"v{vVR}",f"rawV{g}_{i//2}"]+ahead(f"V{g}"),wr=R("v",d,2),tag="fix",earliest=earliest))
    for q in range(4):
        t=vLS; e,par=q//2,q%2
        for tt in range(4):
            lo=vST+16+2*(2*tt)+e; hi=vST+16+2*(2*tt+1)+e
            ops.append(valu(f"v_perm_b32 v{t+tt}, v{hi}, v{lo}, s{sPH if par else sPL}",[f"v{hi}",f"v{lo}"],[f"v{t+tt}"],tag="fix"))
        ops.append(Op(f"ds_write_b128 v{vVW}, {rng('v',t,4)} offset:{off+512*q}","W",rd=R("v",t,4)+[f"v{vVW}"],wr=[f"fixV{g}_{q}"],tag="fix",cost=P["wcost"]))
    return ops
def barrier(rd,wr): return Op("s_barrier","B",rd=list(rd)+["bar"],wr=list(wr)+["bar"],tag="bar")

def main_prog():
    OFF=P["OFF"]
    units=[]
    for tau in range(12*6+OFF[3]):
        for t in range(4):
            if tau<12: p,k=0,tau
            else:
                x=tau-OFF[t]
                if x<12 or x>=72: continue
                p,k=x//12,x%12
            units.append(dict(t=t,p=p,tau=tau,s=tau%12,first=(k==0),last=(k==11)))
    if P.get("head"):
        n=len(P["head"]); idx={(u["t"],u["tau"]):u for u in units[:n]}
        units[:n]=[idx[x] for x in P["head"]]
    nU=len(units)
    for i,u in enumerate(units):
        u["i"]=i; u["newstep"]= (i==0 or units[i-1]["tau"]!=u["tau"])
        u["drain"]= u["p"]==0 and (u["t"],u["tau"]) in P.get("drain",())
        par=u["t"]%2
        u["pb"]= par if (i==0 or units[i-1]["pb"]!=par) else 1-par
    for i,u in enumerate(units):
        v=units[i+1] if i+1<nU else None
        if P.get("smf",1) and v and u["t"]%2==0 and v["t"]==u["t"]+1 and u["pb"]==0 and v["pb"]==1:
            u["paired"]=0; v["paired"]=1
    prog=[]
    qbuf={}
    pending=[(t,p) for p in range(1,6) for t in range(4)]
    def emit_qload(tp,buf,**kw):
        qbuf[tp]=buf
        ops=qloads(soff(sQo,4*tp[1]+tp[0]),buf[0],buf[1])
        for o in ops:
            for k,v in kw.items(): setattr(o,k,v)
        prog.extend(ops)
    def pre(ops):
        for o in ops: o.due=-1
        prog.extend(ops)
    def pubK(g):
        ops=[barrier([f"fixK{g}_{a}" for a in range(4)],[f"pubK{g}"])]
        if g<2:
            for s in (2*g,2*g+1):
                for j in range(8): ops.append(dsread("a",aKR+32*s+4*j,k_lds(s,j),"kr",[f"pubK{g}"]))
        return ops
    def pubV(g):
        rd=[f"fixV{g}_{a}" for a in range(4)]
        if g<2: rd+=R("a",aKR+64*g,64)
        return [barrier(rd,[f"pubV{g}"])]
    def codepf():
        return [Op(f"global_load_dword v{vLS}, v{vLS+3}, s[52:53]","L",rd=[f"v{vLS+3}"],wr=[f"v{vLS}"],tag="pf")]
    for t in range(4): qbuf[(t,0)]=("a",aQ+16*t)
    xg=[]
    for blk in P["order"]: xg+= [(blk,g) for g in dma_ops(blk)]
    for _ in range(P["npre"]): pre(xg.pop(0)[1])
    if P.get('pf','first')=='mid': pre(codepf())
    work=fix_k(0)+pubK(0)
    k=0
    for o in work:
        pre([o]); k+=1
        if k%P["chunk"]==0: pre(xg.pop(0)[1])
    def item_ops(item,e=None):
        g=int(item[-1])
        if g>=P["merge"]:
            if item[:2]=="fk": return fix_k(g,e)
            return fix_v(g,e)+[barrier([f"fixK{g}_{a}" for a in range(4)]+[f"fixV{g}_{a}" for a in range(4)],[f"pubK{g}",f"pubV{g}"])]
        if item[:2]=="fk": return fix_k(g,e)+pubK(g)
        if item[:2]=="fv": return fix_v(g,e)+pubV(g)
    xn=[0]
    def issue_upto(bi):
        while xg and 64-len(xg)<=bi:
            blk,ops=xg.pop(0)
            e=int(np.interp(64-len(xg)-1,P["xs"],P["xt"])); xn[0]+=1
            for o in ops:
                o.due=e+2
                if o.kind=="X": o.earliest=e
            prog.extend(ops)
    cons=[]
    for t in range(4): cons.append((P["order"].index(f"Q{t}"),("q",t)))
    for it in P["seq"]: cons.append((P["order"].index(it[0][1].upper()+it[0][2]),it))
    cons.sort(key=lambda x:x[0])
    for bi,it in cons:
        issue_upto(4*bi+3+P["ahead"])
        if it[0]=="q": prog.extend(q0_reads(it[1])); continue
        item,e=it[0],it[1]
        ops=item_ops(item,e)
        fx=[o for o in ops if o.tag in ("fix","bar")]
        for k,o in enumerate(fx): o.due=int(it[2]+(it[3]-it[2])*(k+1)/len(fx))
        prog.extend(ops)
    assert not xg
    emit_qload(pending.pop(0),("v",vQL))
    if P.get("pf2"):
        for k,e in enumerate(P["pf2"]):
            prog.append(Op(f"v_add_u32 v{vKD}, 0x8000, v{vKD}" if k else f"v_lshl_add_u32 v{vKD}, v{vA0}, 3, s55","V",rd=[f"v{vKD}",f"v{vA0}"],wr=[f"v{vKD}"],tag="pf",earliest=e-4,due=e))
            prog.append(Op(f"global_load_dword v{vVD}, v{vKD}, s[52:53]","L",rd=[f"v{vKD}"],wr=[f"v{vVD}"],tag="pf",earliest=e,due=e+2))
    def chain(u,kb,d,c):
        qb=qbuf[(u["t"],u["p"])]
        for ks in range(4):
            prog.append(mfma(d,kfrag(u["s"],4*kb+ks),(qb[0],qb[1]+4*ks), c if ks==0 else d, tag="qk"))
    def kloads(u):
        if u["newstep"] and u["s"]>=NRES and not u.get("kl"):
            u["kl"]=True
            for j in range(8): prog.append(dsread("a",aKF+4*j,k_lds(u["s"],j),"kf",[f"pubK{u['s']//2}"]))
    def hoist(u):
        c=vC+4*u["t"]; sb=vS+8*(u["i"]%2)
        chain(u,0,c,None)
        u["post"]=max_ops(c)
        for r in range(4): u["post"].append(valu(f"v_add_f32 v{sb+r}, v{c+r}, v{vM0}",[f"v{c+r}",f"v{vM0}"],[f"v{sb+r}"],tag="max"))
        for r in range(4): u["post"].append(valu(f"v_mov_b32 v{c+r}, v{vM0}",[f"v{vM0}"],[f"v{c+r}"],tag="max"))
        u["hoisted"]=True
    hoist(units[0])
    def do_qk(nx,n2):
        if nx: kloads(nx)
        if n2 and n2["first"] and not n2.get("hoisted") and not n2["drain"]:
            assert n2["s"]<NRES or n2["tau"]==nx["tau"], n2
            hoist(n2)
        if nx:
            c=vC+4*nx["t"]; sb=vS+8*(nx["i"]%2)
            if nx["first"]:
                if not nx.get("hoisted"): hoist(nx)
                prog.extend(nx["post"])
                chain(nx,1,sb+4,c)
            else:
                chain(nx,0,sb,c); chain(nx,1,sb+4,c)
            if nx["last"] and pending:
                emit_qload(pending.pop(0),qbuf[(nx["t"],nx["p"])])
    held=[]; defer=[]
    def do_pv(i):
        if i<0: return
        u=units[i]; t=u["t"]; pb=vP+4*u["pb"]
        if u["newstep"]:
            for b in range(8): prog.append(dsread("a",aVF+4*b,v_lds(u["s"],b),"vf",[f"pubV{u['s']//2}"]))
        stage = u["last"] and (1<=u["p"]<5 or (u["p"]==0 and t==0))
        if "paired" not in u: prog.append(lsum_dense(t,pb))
        elif u["paired"]==1:
            prog.append(lsum_pair(t//2))
            prog.extend(defer); defer.clear()
        for b in range(8):
            o=vO+32*t+4*b
            prog.append(mfma(vST+4*b if stage else o,("v",pb),("a",aVF+4*b),None if u["first"] else o,tag="pv"))
        if u["last"]:
            idx=4*u["p"]+t
            G.P_X[0]=vLS+t
            e0,e1=epilogue(vST if stage else vO+32*t, t, soff(sOo,idx), idx)
            dst = defer if u.get("paired")==0 else prog
            dst.extend(e0)
            if u["p"]==0 and t==0: held.extend(e1)
            else:
                dst.extend(e1)
                if u["p"]==0 and t==3: prog.extend(held)
    for i in range(-1,nU):
        nx=units[i+1] if i+1<nU else None
        n2=units[i+2] if i+2<nU else None
        if nx and nx["drain"]:
            do_pv(i); do_qk(nx,n2)
        else:
            do_qk(nx,n2); do_pv(i)
        if nx:
            prog.extend(sm_ops(vS+8*(nx["i"]%2), vP+4*nx["pb"]))
    return prog

def setup_text():
    REMAP=""" s_and_b32 s3, s2, 7
 s_lshl_b32 s3, s3, 5
 s_lshr_b32 s4, s2, 3
 s_or_b32 s3, s3, s4
""" if P.get("remap",1) else " s_mov_b32 s3, s2\n"
    PF=f" global_load_dword v{vM1}, v{vM0}, s[52:53]\n" if P.get("pf","first")=="first" else ""
    return f"""
 s_cmp_ge_u32 s2, 256
 s_cbranch_scc1 L_end
 s_load_dwordx4 s[44:47], s[0:1], 0
 s_load_dwordx4 s[48:51], s[0:1], 16
{REMAP} s_getpc_b64 s[52:53]
 v_and_b32 v1, 63, v0
 v_lshrrev_b32 v2, 6, v0
 v_lshlrev_b32 v{vA0}, 4, v1
 v_readfirstlane_b32 s{sW}, v2
 s_lshr_b32 s54, s2, 3
 s_lshl_b32 s54, s54, 2
 s_add_u32 s54, s54, s{sW}
 s_mul_i32 s55, s54, 5042
 s_lshr_b32 s55, s55, 16
 s_mul_i32 s55, s55, 13
 s_sub_u32 s54, s54, s55
 s_lshl_b32 s54, s54, 13
 v_lshl_add_u32 v{vM0}, v1, 7, s54
{PF} s_lshl_b32 s55, s{sW}, 13
 s_add_u32 s55, s55, {P.get('pf2base',8192)}
 v_and_b32 v3, 15, v1
 v_lshrrev_b32 v4, 4, v1
 v_and_b32 v7, 7, v1
 v_lshrrev_b32 v8, 3, v1
 v_lshlrev_b32 v5, 8, v7
 v_lshl_add_u32 v{vKD}, v8, 4, v5
 v_and_b32 v5, 3, v8
 v_lshrrev_b32 v6, 5, v1
 v_lshl_add_u32 v5, v5, 2, v6
 v_lshlrev_b32 v5, 8, v5
 v_lshl_add_u32 v{vVD}, v7, 4, v5
 s_mul_i32 s{sKV}, s3, 98304
 s_lshr_b32 s{sTmp}, s{sW}, 1
 s_lshl_b32 s{sTmp}, s{sTmp}, 13
 s_add_u32 s{sKV}, s{sKV}, s{sTmp}
 s_and_b32 s{sTmp}, s{sW}, 1
 s_lshl_b32 s{sKb}, s{sTmp}, 11
 s_add_u32 s{sKb}, s{sKb}, s{sKV}
 s_lshl_b32 s{sVb}, s{sTmp}, 7
 s_add_u32 s{sVb}, s{sVb}, s{sKV}
 s_lshl_b32 s{sLw}, s{sW}, 12
 s_mul_i32 s{sQB}, s3, 393216
 s_mul_i32 s{sTmp}, s{sW}, 98304
 s_add_u32 s{sQB}, s{sQB}, s{sTmp}
 v_and_b32 v5, 3, v3
 v_lshrrev_b32 v6, 2, v3
 v_lshl_add_u32 v5, v5, 2, v6
 v_lshlrev_b32 v5, 8, v5
 v_lshl_add_u32 v{vQO}, v4, 4, v5
 v_lshrrev_b32 v5, 3, v3
 v_lshlrev_b32 v5, 12, v5
 v_lshl_add_u32 v5, v4, 7, v5
 v_lshl_add_u32 v{vB0}, v7, 4, v5
 v_add_u32 v{vB1}, 0x10000, v{vB0}
 v_add_u32 v{vB2}, 0x20000, v{vB0}
 v_lshlrev_b32 v9, 12, v2
 v_add_u32 v{vKF}, v9, v{vA0}
 v_add_u32 v{vKF}, 0x10000, v{vKF}
 v_lshl_add_u32 v{vVR}, v1, 3, v9
 v_and_b32 v5, 1, v1
 v_lshl_add_u32 v5, v5, 11, v9
 v_lshl_add_u32 v5, v4, 7, v5
 v_lshrrev_b32 v6, 1, v3
 v_lshl_add_u32 v{vVW}, v6, 4, v5
 v_and_b32 v5, 3, v7
 v_lshrrev_b32 v6, 2, v7
 v_lshl_add_u32 v5, v5, 2, v6
 v_lshlrev_b32 v5, 8, v5
 v_lshl_add_u32 v{vQD}, v8, 4, v5
 v_lshrrev_b32 v5, 3, v3
 v_lshl_add_u32 v5, v5, 11, v9
 v_lshl_add_u32 v5, v4, 7, v5
 v_lshl_add_u32 v{vQR}, v7, 4, v5
 v_add_u32 v{vQR2}, 0x18000, v{vQR}
 v_bfe_u32 v5, v1, 1, 1
 v_lshrrev_b32 v6, 5, v1
 v_cmp_eq_u32 vcc, v5, v6
 v_mov_b32 v5, 0x3f803f80
 v_and_b32 v6, 3, v1
 v_cndmask_b32 v{vSPA}, 0, v5, vcc
 v_cndmask_b32 v{vSPA+1}, 0, v5, vcc
 v_cndmask_b32 v{vSPA+2}, 0, v5, vcc
 v_cndmask_b32 v{vSPA+3}, 0, v5, vcc
 v_cmp_eq_u32 vcc, 0, v6
 v_and_b32 v6, 1, v1
 v_mul_u32_u24 v6, 0xaaaa, v6
 v_cndmask_b32 v{vSEL}, 0, v5, vcc
 v_cndmask_b32 v{vSEL+1}, 0, v5, vcc
 v_cndmask_b32 v{vSEL+2}, 0, v5, vcc
 v_cndmask_b32 v{vSEL+3}, 0, v5, vcc
 v_or_b32 v{vIDX}, 0x4444, v6
 v_mov_b32 v{vL+0}, 0
 v_mov_b32 v{vL+1}, 0
 v_mov_b32 v{vL+2}, 0
 v_mov_b32 v{vL+3}, 0
 v_mov_b32 v{vL+4}, 0
 v_mov_b32 v{vL+5}, 0
 v_mov_b32 v{vL+6}, 0
 v_mov_b32 v{vL+7}, 0
 v_mov_b32 v{vL+8}, 0
 v_mov_b32 v{vL+9}, 0
 s_mov_b32 s{sC}, {CSCALE:#x}
 s_mov_b32 s{sTH}, {THRESH:#x}
 s_mov_b32 s{sFL}, 0
 s_mov_b32 s{sPL}, 0x05040100
 s_mov_b32 s{sPH}, 0x07060302
 s_mov_b32 s{sQ+2}, 100663296
 s_mov_b32 s{sQ+3}, 0x20000
 s_mov_b32 s{sK+2}, 25165824
 s_mov_b32 s{sK+3}, 0x20000
 s_mov_b32 s{sV+2}, 25165824
 s_mov_b32 s{sV+3}, 0x20000
 s_mov_b32 s{sO+2}, 100663296
 s_mov_b32 s{sO+3}, 0x20000
 s_waitcnt lgkmcnt(0)
 s_mov_b32 s{sQ}, s44
 s_mov_b32 s{sQ+1}, s45
 s_mov_b32 s{sK}, s46
 s_mov_b32 s{sK+1}, s47
 s_mov_b32 s{sV}, s48
 s_mov_b32 s{sV+1}, s49
 s_mov_b32 s{sO}, s50
 s_mov_b32 s{sO+1}, s51
"""
import post, re
def hook(mt):
    W=P.get("warm")
    if not W: return mt
    out=[]; nx=0; nm=0; todo=list(enumerate(W)); scc_live=False
    for x in mt:
        out.append(x)
        if x.endswith(" lds"): nx+=1
        if x.startswith("v_mfma") or x.startswith("v_smfmac"): nm+=1
        if todo:
            r,(kind,n,pages)=todo[0]
            if x.startswith("s_cmp"): scc_live=True
            if x.startswith("s_cselect"): scc_live=False
            if (kind=="x" and nx==n) or (kind=="m" and nm>=n and not scc_live and x.startswith("v_mfma")):
                out+=post.warm_text(r,sW); todo.pop(0)
    return out
def postf(path):
    W=P.get("warm")
    if not W: return
    s=open(path).read()
    tmp=re.sub(r"@E(\d+)_\d@",lambda m:f"L_wb{m.group(1)}",s)
    open(path,"w").write(tmp)
    sz=post.sizes(path)
    open(path,"w").write(s)
    post.sizes_orig=post.sizes
    post.sizes=lambda p: sz
    n=post.add_stubs(path,G.NAME,sW,nlines=P.get("nlines",1),rounds=[(None,w[2]) for w in W])
    post.sizes=post.sizes_orig
G.HOOK=hook; G.POST=postf
G.main_prog=main_prog; G.setup_text=setup_text; G.staging_v1=lambda: []
if __name__=="__main__":
    out=sys.argv[1] if len(sys.argv)>1 else "k2.s"
    if len(sys.argv)>2 and sys.argv[2]=="stamp": G.STAMP=True
    if len(sys.argv)>3: G.STAMP_AT=[int(x) for x in sys.argv[3].split(",")]
    G.gen(out)
    from build import build
    print(build(out))
```

```python
import sys, struct, math
from sched import *
NAME="standalone__gqa_softmax__near_ridge_kernel"
def f2u(x): return struct.unpack("<I",struct.pack("<f",x))[0]
CSCALE = f2u(math.log2(math.e)/math.sqrt(128.0))
THRESH = f2u(2.0**60)

vO=0; vL=128; vC=144; vS=160; vP=176; vST=184; vLS=216; vQL=220; vONE=236; vT=240
vA0=244; vA1=245; vA2=246; vQO=245; vM0=246; vM1=247
aQ=0; aKR=64; aKF=192; aVF=224
sQ,sK,sV,sO = 8,12,16,20
sW=24; sQB=25; sKV=26; sC=27; sTH=28; sFL=29; sPL=30; sPH=31; sQo=32; sOo=33; sTmp=34
NRES=4
MF="v_mfma_f32_16x16x32_bf16"
LDNT=" nt"; STNT=" sc1 nt"

def lds_addr(off):
    b=off>>16
    return (vA0,vA1,vA2)[b], off&0xffff
def k_lds(s,j): return 98304+(s-NRES)*8192+j*1024
def v_lds(s,b): return s*8192+b*1024

def mfma(d,a,b,c,tag=None):
    ct = "0" if c is None else rng("v",c,4)
    return Op(f"{MF} {rng('v',d,4)}, {rng(a[0],a[1],4)}, {rng(b[0],b[1],4)}, {ct}","M",
              rd=R(a[0],a[1],4)+R(b[0],b[1],4), wr=R("v",d,4), rc=[] if c is None else R("v",c,4), tag=tag)
def dsread(f,base,off,tag,extra=()):
    a,o=lds_addr(off)
    return Op(f"ds_read_b128 {rng(f,base,4)}, v{a} offset:{o}","D",rd=[f"v{a}"]+list(extra),wr=R(f,base,4),tag=tag)
def valu(text,rd,wr,kind="V",tag=None): return Op(text,kind,rd=rd,wr=wr,tag=tag)

def kfrag(s,j):
    return ("a", aKR+32*s+4*j) if s<NRES else ("a", aKF+4*j)

def qloads(idx_expr_op, dstf, dst, tag="ql", lat=None):
    ops=[idx_expr_op]
    for ks in range(4):
        ops.append(Op(f"buffer_load_dwordx4 {rng(dstf,dst+4*ks,4)}, v{vQO}, s[{sQ}:{sQ+3}], s{sQo} offen offset:{64*ks}{LDNT}","L",
                      rd=[f"v{vQO}",f"s{sQo}"],wr=R(dstf,dst+4*ks,4),tag=tag,lat=lat))
    return ops

def max_ops(c, tag="max"):
    a,b=vM0,vM1
    return [
      valu(f"v_max3_f32 v{a}, v{c}, v{c+1}, v{c+2}",R("v",c,3),[f"v{a}"],tag=tag),
      valu(f"v_max_f32 v{a}, v{a}, v{c+3}",[f"v{a}",f"v{c+3}"],[f"v{a}"],tag=tag),
      valu(f"v_mov_b32 v{b}, v{a}",[f"v{a}"],[f"v{b}"],tag=tag),
      valu(f"v_permlane16_swap_b32 v{a}, v{b}",[f"v{a}",f"v{b}"],[f"v{a}",f"v{b}"],"P",tag=tag),
      valu(f"v_max_f32 v{a}, v{a}, v{b}",[f"v{a}",f"v{b}"],[f"v{a}"],tag=tag),
      valu(f"v_mov_b32 v{b}, v{a}",[f"v{a}"],[f"v{b}"],tag=tag),
      valu(f"v_permlane32_swap_b32 v{a}, v{b}",[f"v{a}",f"v{b}"],[f"v{a}",f"v{b}"],"P",tag=tag),
      valu(f"v_min_f32 v{a}, -v{a}, -v{b}",[f"v{a}",f"v{b}"],[f"v{a}"],tag=tag),
    ]

vSPA=vONE; vSEL=vL+12; vIDX=vL+10
def acc_of(t): return vL+2*t
def epilogue(src, t, soff_op, flagbit, tag="epi"):
    a=acc_of(t); x=P_X[0]
    pre=[valu(f"v_add_f32 v{x}, v{a}, v{a+1}",[f"v{a}",f"v{a+1}"],[f"v{x}"],tag=tag),
         valu(f"v_mov_b32 v{a}, 0",[],[f"v{a}"],tag=tag),
         valu(f"v_mov_b32 v{a+1}, 0",[],[f"v{a+1}"],tag=tag)]
    ops=[]
    if flagbit is not None:
        ops+=[valu(f"v_cmp_nge_f32 vcc, s{sTH}, v{x}",[f"v{x}",f"s{sTH}"],["vcc"],tag=tag),
              Op("s_cmp_lg_u64 vcc, 0","S",rd=["vcc"],wr=["scc"],tag=tag),
              Op(f"s_cselect_b32 s{sTmp}, {1<<flagbit}, 0","S",rd=["scc"],wr=[f"s{sTmp}"],tag=tag),
              Op(f"s_or_b32 s{sFL}, s{sFL}, s{sTmp}","S",rd=[f"s{sFL}",f"s{sTmp}"],wr=[f"s{sFL}","scc"],tag=tag)]
    ops.append(valu(f"v_rcp_f32 v{x}, v{x}",[f"v{x}"],[f"v{x}"],"E",tag=tag))
    for g in range(1,4):
        ops.append(valu(f"v_mov_b32_dpp v{x}, v{x} row_shl:{4*g} row_mask:{1<<g:#x} bank_mask:0xf",[f"v{x}"],[f"v{x}"],"P",tag=tag))
    ops.append(soff_op)
    for r in range(4):
        for j in range(4):
            u,y=src+8*j+r, src+8*j+4+r
            for z in (u,y):
                ops.append(valu(f"v_mul_f32_dpp v{z}, v{x}, v{z} row_newbcast:{r} row_mask:0xf bank_mask:0xf",[f"v{z}",f"v{x}"],[f"v{z}"],"P",tag=tag))
            ops.append(valu(f"v_cvt_pk_bf16_f32 v{vT+j}, v{u}, v{y}",[f"v{u}",f"v{y}"],[f"v{vT+j}"],tag=tag))
        ops.append(Op(f"buffer_store_dwordx4 {rng('v',vT,4)}, v{vA0}, s[{sO}:{sO+3}], s{sOo} offen offset:{1024*r}{STNT}","T",
                      rd=R("v",vT,4)+[f"v{vA0}",f"s{sOo}"],tag=tag,cost=20))
    return pre,ops
P_X=[vLS]
def lsum_dense(t,pb):
    a=acc_of(t)
    return mfma(a,("v",vSEL),("v",pb),a,tag="l")
def lsum_pair(k):
    a=vL+4*k
    o=Op(f"v_smfmac_f32_16x16x64_bf16 {rng('v',a,4)}, {rng('v',vSPA,4)}, {rng('v',vP,8)}, v{vIDX}","M",
         rd=R("v",vSPA,4)+R("v",vP,8)+[f"v{vIDX}"],wr=R("v",a,4),rc=R("v",a,4),tag="l",cost=12)
    return o

def sm_ops(sb,pb,tag="sm",lo=None):
    ops=[]
    for j in range(4):
        b = sb+2*j if (lo is None or j>=2) else lo+2*j
        for e in range(2):
            r=b+e
            ops.append(valu(f"v_exp_f32 v{r}, v{r}",[f"v{r}"],[f"v{r}"],"E",tag=tag))
        ops.append(valu(f"v_cvt_pk_bf16_f32 v{pb+j}, v{b}, v{b+1}",R("v",b,2),[f"v{pb+j}"],tag=tag))
    return ops

def soff(reg, idx): return Op(f"s_add_u32 s{reg}, s{sQB}, {idx*4096}","S",rd=[f"s{sQB}"],wr=[f"s{reg}","scc"],tag="soff")

def main_prog():
    OFF=[0,3,6,9]
    units=[]
    for tau in range(12*6+OFF[3]):
        for t in range(4):
            if tau<12: p,k=0,tau
            else:
                x=tau-OFF[t]
                if x<12 or x>=72: continue
                p,k=x//12,x%12
            units.append(dict(t=t,p=p,tau=tau,s=tau%12,first=(k==0),last=(k==11)))
    nU=len(units)
    for i,u in enumerate(units):
        u["i"]=i; u["newstep"]= (i==0 or units[i-1]["tau"]!=u["tau"])
    land={}
    for p in range(1,6):
        for t in range(4): land[(t,p)]=("v",vQL)
    land[(1,1)]=("v",vST); land[(2,1)]=None; land[(3,1)]=None
    ql_order=[(t,p) for p in range(1,6) for t in range(4) if land[(t,p)]==("v",vQL)]
    prog=[]
    def emit_qload(t,p):
        l=land[(t,p)]
        if l is None: prog.extend(qloads(soff(sQo,4*p+t),"a",aQ+16*t))
        else: prog.extend(qloads(soff(sQo,4*p+t),l[0],l[1]))
    emit_qload(0,1); emit_qload(1,1)
    def chain(u,kb,d,c):
        for ks in range(4):
            prog.append(mfma(d,kfrag(u["s"],4*kb+ks),("a",aQ+16*u["t"]+4*ks), c if ks==0 else d, tag="qk"))
    def kloads(u):
        if u["newstep"] and u["s"]>=NRES and not u.get("kl"):
            u["kl"]=True
            for j in range(8): prog.append(dsread("a",aKF+4*j,k_lds(u["s"],j),"kf"))
    def hoist(u):
        c=vC+4*u["t"]; sb=vS+8*(u["i"]%2)
        chain(u,0,c,None)
        u["post"]=max_ops(c)
        for r in range(4): u["post"].append(valu(f"v_add_f32 v{sb+r}, v{c+r}, v{vM0}",[f"v{c+r}",f"v{vM0}"],[f"v{sb+r}"],tag="max"))
        for r in range(4): u["post"].append(valu(f"v_mov_b32 v{c+r}, v{vM0}",[f"v{vM0}"],[f"v{c+r}"],tag="max"))
        u["hoisted"]=True
    for t in range(4): hoist(units[t])
    for i in range(-1,nU):
        nx=units[i+1] if i+1<nU else None
        n2=units[i+2] if i+2<nU else None
        if nx: kloads(nx)
        if n2 and n2["first"] and not n2.get("hoisted"):
            assert n2["s"]<NRES or n2["tau"]==nx["tau"], n2
            hoist(n2)
        if nx:
            c=vC+4*nx["t"]; sb=vS+8*(nx["i"]%2)
            if nx["first"]:
                prog.extend(nx["post"])
                chain(nx,1,sb+4,c)
            else:
                chain(nx,0,sb,c); chain(nx,1,sb+4,c)
            if nx["last"] and nx["p"]<5:
                t,p=nx["t"],nx["p"]+1; l=land[(t,p)]
                if l is None: emit_qload(t,p)
                else:
                    for r in range(16):
                        prog.append(valu(f"v_accvgpr_write_b32 a{aQ+16*t+r}, v{l[1]+r}",[f"v{l[1]+r}"],[f"a{aQ+16*t+r}"],tag="qcp"))
                    if l==("v",vQL):
                        k=ql_order.index((t,p))
                        if k+1<len(ql_order): emit_qload(*ql_order[k+1])
        if i>=0:
            u=units[i]; t=u["t"]; pb=vP+4*(i%2)
            if u["newstep"]:
                for b in range(8): prog.append(dsread("a",aVF+4*b,v_lds(u["s"],b),"vf"))
            stage = u["last"] and 1<=u["p"]<5
            lo=vL+4*t
            prog.append(mfma(vLS if stage else lo,("v",pb),("v",vONE),None if u["first"] else lo,tag="l"))
            for b in range(8):
                o=vO+32*t+4*b
                prog.append(mfma(vST+4*b if stage else o,("v",pb),("a",aVF+4*b),None if u["first"] else o,tag="pv"))
            if u["last"]:
                idx=4*u["p"]+t
                prog.extend(epilogue(vST if stage else vO+32*t, vLS if stage else lo, soff(sOo,idx), idx))
        if nx:
            prog.extend(sm_ops(vS+8*(nx["i"]%2), vP+4*(nx["i"]%2)))
    return prog

def S(t,rd=(),wr=()): return Op(t,"S",rd=rd,wr=wr)
def Bar(t): return Op(t,"B")

def setup_text():
    return f"""
 s_cmp_ge_u32 s2, 256
 s_cbranch_scc1 L_end
 s_load_dwordx4 s[36:39], s[0:1], 0
 s_load_dwordx4 s[40:43], s[0:1], 16
 s_getpc_b64 s[44:45]
 v_lshlrev_b32 v1, 7, v0
 global_load_dword v250, v1, s[44:45]
 v_add_u32 v1, 0x8000, v1
 global_load_dword v251, v1, s[44:45]
 v_add_u32 v1, 0x8000, v1
 global_load_dword v252, v1, s[44:45]
 v_and_b32 v1, 63, v0
 v_lshrrev_b32 v2, 6, v0
 v_lshlrev_b32 v{vA0}, 4, v1
 v_readfirstlane_b32 s{sW}, v2
 v_add_u32 v{vA1}, 0x10000, v{vA0}
 v_add_u32 v{vA2}, 0x20000, v{vA0}
 v_and_b32 v3, 15, v1
 v_lshrrev_b32 v4, 4, v1
 v_and_b32 v5, 3, v3
 v_lshrrev_b32 v6, 2, v3
 v_lshl_add_u32 v5, v5, 2, v6
 v_lshlrev_b32 v5, 8, v5
 v_lshl_add_u32 v{vQO}, v4, 4, v5
 v_lshlrev_b32 v5, 8, v3
 v_lshl_add_u32 v253, v4, 4, v5
 v_lshlrev_b32 v5, 10, v4
 v_lshl_add_u32 v254, v3, 4, v5
 v_lshlrev_b32 v5, 13, v2
 v_add_u32 v255, v5, v{vA0}
 v_mov_b32 v{vONE}, 0x3f803f80
 v_mov_b32 v{vONE+1}, 0x3f803f80
 v_mov_b32 v{vONE+2}, 0x3f803f80
 v_mov_b32 v{vONE+3}, 0x3f803f80
 s_mov_b32 s{sC}, {CSCALE:#x}
 s_mov_b32 s{sTH}, {THRESH:#x}
 s_mov_b32 s{sFL}, 0
 s_mov_b32 s{sPL}, 0x05040100
 s_mov_b32 s{sPH}, 0x07060302
 s_mul_i32 s{sQB}, s2, 393216
 s_mul_i32 s{sKV}, s{sW}, 98304
 s_add_u32 s{sQB}, s{sQB}, s{sKV}
 s_mul_i32 s{sKV}, s2, 98304
 s_lshl_b32 s{sTmp}, s{sW}, 13
 s_add_u32 s{sKV}, s{sKV}, s{sTmp}
 s_waitcnt lgkmcnt(0)
 s_mov_b32 s{sQ}, s36
 s_mov_b32 s{sQ+1}, s37
 s_mov_b32 s{sQ+2}, 100663296
 s_mov_b32 s{sQ+3}, 0x20000
 s_mov_b32 s{sK}, s38
 s_mov_b32 s{sK+1}, s39
 s_mov_b32 s{sK+2}, 25165824
 s_mov_b32 s{sK+3}, 0x20000
 s_mov_b32 s{sV}, s40
 s_mov_b32 s{sV+1}, s41
 s_mov_b32 s{sV+2}, 25165824
 s_mov_b32 s{sV+3}, 0x20000
 s_mov_b32 s{sO}, s42
 s_mov_b32 s{sO+1}, s43
 s_mov_b32 s{sO+2}, 100663296
 s_mov_b32 s{sO+3}, 0x20000
"""

def staging_v1():
    ops=[]
    vW,vW1,vW2=255,192,193
    ops.append(valu(f"v_add_u32 v{vW1}, 0x10000, v{vW}",[f"v{vW}"],[f"v{vW1}"]))
    ops.append(valu(f"v_add_u32 v{vW2}, 0x20000, v{vW}",[f"v{vW}"],[f"v{vW2}"]))
    so=[46+i for i in range(6)]
    for g in range(3):
        for h in range(2):
            ops.append(S(f"s_add_u32 s{so[2*g+h]}, s{sKV}, {g*32768+h*4096}",wr=[f"s{so[2*g+h]}"]))
    def kload(g):
        for j in range(8):
            kb,ks=j//4,j%4; d=32*g+4*j
            ops.append(Op(f"buffer_load_dwordx4 {rng('v',d,4)}, v253, s[{sK}:{sK+3}], s{so[2*g+kb]} offen offset:{64*ks}{LDNT}","L",wr=R("v",d,4)))
    def vload(g):
        for i in range(8):
            d=96+32*g+4*i
            ops.append(Op(f"buffer_load_dwordx4 {rng('v',d,4)}, v254, s[{sV}:{sV+3}], s{so[2*g+i//4]} offen offset:{256*(i%4)}{LDNT}","L",wr=R("v",d,4)))
    kload(0); kload(1); kload(2)
    vload(0); vload(1)
    for t in range(4):
        ops.extend(qloads(soff(sQo,t),"a",aQ+16*t))
    def kproc(g):
        base,off=((vW1,0),(vW1,32768),(vW2,0))[g]
        for j in range(8):
            d=32*g+4*j
            for e in range(4):
                x=d+e; t0=194+2*(e%2); t1=t0+1
                ops.append(valu(f"v_lshlrev_b32 v{t0}, 16, v{x}",[f"v{x}"],[f"v{t0}"]))
                ops.append(valu(f"v_and_b32 v{t1}, 0xffff0000, v{x}",[f"v{x}"],[f"v{t1}"]))
                ops.append(valu(f"v_mul_f32 v{t0}, s{sC}, v{t0}",[f"v{t0}"],[f"v{t0}"]))
                ops.append(valu(f"v_mul_f32 v{t1}, s{sC}, v{t1}",[f"v{t1}"],[f"v{t1}"]))
                ops.append(valu(f"v_cvt_pk_bf16_f32 v{x}, v{t0}, v{t1}",[f"v{t0}",f"v{t1}"],[f"v{x}"]))
            ops.append(Op(f"ds_write_b128 v{base}, {rng('v',d,4)} offset:{off+1024*j}","W",rd=R("v",d,4)+[f"v{base}"]))
    def vproc(g):
        base,off=((vW,0),(vW,32768),(vW1,0))[g]
        r0=96+32*g
        for b in range(8):
            t=200+4*(b%2)
            for q in range(4):
                lo=r0+4*(2*q)+b//2; hi=r0+4*(2*q+1)+b//2
                ops.append(valu(f"v_perm_b32 v{t+q}, v{hi}, v{lo}, s{sPH if b%2 else sPL}",[f"v{hi}",f"v{lo}"],[f"v{t+q}"]))
            ops.append(Op(f"ds_write_b128 v{base}, {rng('v',t,4)} offset:{off+1024*b}","W",rd=R("v",t,4)+[f"v{base}"]))
    kproc(0)
    vload(2)
    kproc(1); kproc(2)
    ops.append(Bar("s_waitcnt lgkmcnt(0)")); ops.append(Bar("s_barrier"))
    for s in range(NRES):
        for j in range(8): ops.append(dsread("a",aKR+32*s+4*j,(8+s)*8192+1024*j,"kr"))
    vproc(0); vproc(1)
    ops.append(Bar("s_waitcnt lgkmcnt(0)")); ops.append(Bar("s_barrier"))
    vproc(2)
    ops.append(Bar("s_waitcnt vmcnt(0) lgkmcnt(0)")); ops.append(Bar("s_barrier"))
    return ops

def slow_path():
    ops=[]
    ops.append(S(f"s_lshl_b32 s{sTmp}, s35, 12",wr=[f"s{sTmp}"]))
    ops.extend(qloads(S(f"s_add_u32 s{sQo}, s{sQB}, s{sTmp}",wr=[f"s{sQo}"]),"a",aQ))
    c=vC
    for r in range(2): ops.append(valu(f"v_mov_b32 v{acc_of(0)+r}, 0",[],[f"v{acc_of(0)+r}"]))
    def kl(s):
        if s>=NRES:
            for j in range(8): ops.append(dsread("a",aKF+4*j,k_lds(s,j),"kf"))
    def chain(s,kb,d,cc):
        for ks in range(4): ops.append(mfma(d,kfrag(s,4*kb+ks),("a",aQ+4*ks),cc if ks==0 else d))
    for s in range(12):
        kl(s); chain(s,0,vS,None); chain(s,1,vS+4,None)
        for r in range(4):
            if s==0: ops.append(valu(f"v_max_f32 v{c+r}, v{vS+r}, v{vS+4+r}",[f"v{vS+r}",f"v{vS+4+r}"],[f"v{c+r}"]))
            else: ops.append(valu(f"v_max3_f32 v{c+r}, v{c+r}, v{vS+r}, v{vS+4+r}",[f"v{c+r}",f"v{vS+r}",f"v{vS+4+r}"],[f"v{c+r}"]))
    ops.extend(max_ops(c))
    for r in range(4): ops.append(valu(f"v_mov_b32 v{c+r}, v{vM0}",[f"v{vM0}"],[f"v{c+r}"]))
    for s in range(12):
        kl(s)
        for b in range(8): ops.append(dsread("a",aVF+4*b,v_lds(s,b),"vf"))
        chain(s,0,vS,c); chain(s,1,vS+4,c)
        ops.extend(sm_ops(vS,vP))
        ops.append(lsum_dense(0,vP))
        for b in range(8): ops.append(mfma(vO+4*b,("v",vP),("a",aVF+4*b),None if s==0 else vO+4*b))
    P_X[0]=vLS
    e0,e1=epilogue(vO,0,S(f"s_mov_b32 s{sOo}, s{sQo}",rd=[f"s{sQo}"],wr=[f"s{sOo}"]),None)
    ops.extend(e0+e1)
    return ops

HEADER = open("standalone__gqa_softmax__near_ridge.s.ref").read().split("; @launch")[0]

STAMP=False
HOOK=lambda mt: mt
POST=lambda path: None
STAMP_AT=408
ABL=lambda o: False
def stamp(k):
    if not STAMP: return []
    return [f"s_memtime s[60:61]",f"s_memrealtime s[62:63]","s_waitcnt lgkmcnt(0)",f"s_mov_b32 s{64+2*k}, s60",f"s_mov_b32 s{65+2*k}, s62"]
def stamp_store(n):
    if not STAMP: return ""
    t=" s_waitcnt vmcnt(0)\n"+"\n".join(" "+x for x in stamp(n-1))+"\n"
    t+=" s_load_dwordx2 s[56:57], s[0:1], 40\n s_waitcnt lgkmcnt(0)\n s_mov_b32 s58, 402653184\n s_mov_b32 s59, 0x20000\n"
    t+=f" s_lshl_b32 s60, s2, 2\n s_add_u32 s60, s60, s{sW}\n s_lshl_b32 s60, s60, 7\n v_mov_b32 v1, s60\n"
    for k in range(2*n):
        t+=f" v_mov_b32 v2, s{64+k}\n buffer_store_dword v2, v1, s[56:59], 0 offen offset:{4*k}\n"
    return t
def insert_stamps(mt, every, k0):
    if not STAMP: return mt,k0
    out=[];c=0;k=k0
    for x in mt:
        if x.startswith("v_mfma") or x.startswith("v_smfmac"):
            c+=1
            if (c in every if isinstance(every,(list,tuple)) else c%every==0):
                out+=["s_waitcnt lgkmcnt(0)"]+stamp(k); k+=1
        out.append(x)
    return out,k
def gen(path):
    st,n1=finalize(staging_v1(),False)
    mp=schedule(main_prog())
    mp=[o for o in mp if not ABL(o)]
    mt,n2=finalize(mp)
    sp,n3=finalize(slow_path(),False)
    print("nops",n1,n2,n3,"instrs",len(st),len(mt),len(sp))
    s=HEADER+"; @launch grid=(256,1,1) block=(256,1,1) lds=163840\n"
    s+=f""".amdgcn_target "amdgcn-amd-amdhsa--gfx950"
.text
.globl {NAME}
.p2align 12
.p2align 8
.type {NAME},@function
{NAME}:"""
    mt,nk=insert_stamps(mt,STAMP_AT,2)
    mt=HOOK(mt)
    s+="\n"+"\n".join(" "+x for x in stamp(0))
    s+=setup_text()
    s+="\n".join(" "+x for x in st)+"\n"
    s+="\n".join(" "+x for x in stamp(1))+"\n"
    s+="\n".join((x if x.endswith(":") else " "+x) for x in mt)+"\n"
    s+=stamp_store(nk+1)
    s+=f"""L_slow:
 s_cmp_eq_u32 s{sFL}, 0
 s_cbranch_scc1 L_end
 s_waitcnt vmcnt(0) lgkmcnt(0)
 s_nop 15
 s_ff1_i32_b32 s35, s{sFL}
 s_bitset0_b32 s{sFL}, s35
"""
    s+="\n".join(" "+x for x in sp)+"\n"
    s+=""" s_branch L_slow
L_end:
 s_endpgm
.fill 4096, 4, 0xbf800000
.section .rodata,"a"
.p2align 6
.amdhsa_kernel %s
  .amdhsa_next_free_vgpr 512
  .amdhsa_next_free_sgpr 100
  .amdhsa_accum_offset 256
  .amdhsa_group_segment_fixed_size 0
  .amdhsa_kernarg_size 48
  .amdhsa_user_sgpr_count 2
  .amdhsa_user_sgpr_kernarg_segment_ptr 1
  .amdhsa_system_sgpr_workgroup_id_x 1
.end_amdhsa_kernel
""" % NAME
    open(path,"w").write(s)
    POST(path)
if __name__=="__main__":
    out=sys.argv[1] if len(sys.argv)>1 else "k1.s"
    if len(sys.argv)>2 and sys.argv[2]=="stamp": STAMP=True
    gen(out)
    from build import build
    print(build(out))
```

```python
import re, heapq

def R(f, lo, n=1):
    return [f"{f}{i}" for i in range(lo, lo+n)]
def rng(f, lo, n):
    return f"{f}{lo}" if n == 1 else f"{f}[{lo}:{lo+n-1}]"

class Op:
    __slots__ = ("id","text","kind","rd","wr","rc","cost","preds","succs","dl","hd","pos","midx","np","earliest","tag","lat","due","hard","pr","est")
    def __init__(s, text, kind, rd=(), wr=(), rc=(), cost=None, tag=None, earliest=None, lat=None, due=None, hard=None):
        s.text=text; s.kind=kind; s.rd=list(rd); s.wr=list(wr); s.rc=list(rc)
        s.cost = cost if cost is not None else {"M":8,"V":4,"P":4,"E":8,"D":4,"W":4,"L":8,"T":8,"S":4,"X":8,"B":4}[kind]
        s.preds=[]; s.succs=[]; s.pos=None; s.midx=None; s.tag=tag; s.earliest=earliest; s.lat=lat; s.due=due; s.hard=hard
VALU = ("V","P","E")
ASYNC_DS=("D",); ASYNC_VM=("L",)

def req_ws(p, c, dep, reg):
    if p.kind=="M":
        if dep in ("RAW","WAW"):
            if c.kind=="M":
                if dep=="RAW":
                    if reg in c.rc and reg not in c.rd:
                        return 0 if c.rc==p.wr else 6
                    return 8
                return 0
            return 8
        if dep=="WAR":
            if reg in p.rc and c.kind!="M": return 3
            return 0
    if p.kind in VALU:
        if dep=="RAW":
            if c.kind=="M": return 2
            if c.kind=="P": return 2
            if p.kind=="E" and c.kind in ("V","P","D"): return 1
            if reg.startswith("s") or reg=="vcc":
                if c.kind in ("L","T","X"): return 5
                if c.kind in VALU: return 2
                return 1
        return 0
    if p.kind in ("T","W") and dep=="WAR":
        return 2
    if p.kind=="S" and dep=="RAW" and reg=="m0": return 1
    return 0

def build_deps(prog):
    lastw={}; readers={}
    for i,o in enumerate(prog):
        o.id=i; o.preds=[]; o.succs=[]
    for o in prog:
        deps={}
        def add(p,dep,reg):
            if p is o: return
            deps.setdefault(p.id,[p,[]])[1].append((dep,reg))
        for r in o.rd+o.rc:
            if r in lastw: add(lastw[r],"RAW",r)
        for r in o.wr:
            if r in lastw: add(lastw[r],"WAW",r)
            for q in readers.get(r,()): add(q,"WAR",r)
        for r in o.rd+o.rc: readers.setdefault(r,[]).append(o)
        for r in o.wr:
            lastw[r]=o; readers[r]=[]
        for p,lst in deps.values():
            ws=max(req_ws(p,o,d,r) for d,r in lst)
            raw=any(d=="RAW" and r[0]!="@" for d,r in lst)
            o.preds.append((p,ws,raw)); p.succs.append((o,ws,raw))

RANK={"B":0,"S":0,"D":1,"W":1,"L":1,"T":1,"X":1,"V":2,"P":2,"E":2}
DS_LAT=9
VM_LAT=150
CAP=8
T_WINDOW=40
ALAP=True
PAIRUP=True
PADNOP=True
DS_AGE=7
VM_AGE=120
L_SPACE=4
L_PRIO=100
W_LAT=9
W_SPACE=4
V_SPACE=1
VM_EARLY=200
L_WINDOW=60
LATE_OVERFLOW=True

def schedule(prog, verbose=True):
    build_deps(prog)
    ms=[o for o in prog if o.kind=="M"]
    for i,m in enumerate(ms): m.midx=i
    N=len(ms); INF=10**9
    def soft(p,c,ws,raw):
        if raw and p.kind=="D": return DS_LAT
        if raw and p.kind in "LX": return p.lat if p.lat is not None else VM_LAT
        if raw and p.kind=="W": return W_LAT
        if c.kind=="T" and raw and p.kind=="V": return 1 if c.due is not None else T_WINDOW//2-6
        if c.kind=="M": return 2 if ws else 0
        if RANK[p.kind]>RANK[c.kind]: return 1
        return 1 if (ws or p.kind=="E" or c.kind=="E") else 0
    for o in reversed(prog):
        if o.kind=="M": continue
        dl=INF; hd=INF
        for c,ws,raw in o.succs:
            if c.kind=="M":
                dl=min(dl,c.midx-1-soft(o,c,ws,raw)); hd=min(hd,c.midx-1)
            else:
                dl=min(dl,c.dl-soft(o,c,ws,raw)); hd=min(hd,c.hd)
        if o.due is not None:
            dl=min(dl,o.due)
            if o.due<0: hd=-1
        if o.hard is not None:
            dl=min(dl,o.hard); hd=min(hd,o.hard)
        o.dl=dl; o.hd=hd
    for o in prog:
        if o.kind=="M": continue
        e=-1 if o.earliest is None else o.earliest
        for p,ws,raw in o.preds:
            if p.kind=="M": e=max(e,p.midx+(2 if ws>=6 else 0))
            else: e=max(e,p.est+min(soft(p,o,ws,raw),DS_LAT))
        o.est=e
    cap=[16-m.cost for m in ms]
    order=sorted([o for o in prog if o.kind!="M"],key=lambda x:(-min(x.dl,N),-x.id))
    done=set()
    def alap(o):
        if o.id in done: return
        done.add(o.id)
        if o.dl>INF//2:
            o.pr=INF; return
        d=min(o.dl,N-1)
        for c,ws,raw in o.succs:
            if c.kind!="M":
                alap(c); d=min(d,c.pr-soft(o,c,ws,raw))
        need=0 if o.kind in "SB" else min(o.cost,8)
        g=d
        while g>o.est and g>=0 and cap[g]<need: g-=1
        if g<0 or cap[g]<need: g=d
        if g>=0: cap[g]-=need
        o.pr=g
    import sys; sys.setrecursionlimit(100000)
    if ALAP:
        for o in order: alap(o)
    else:
        for o in order: o.pr=o.dl
    for o in prog: o.np=len(o.preds); o.pos=None
    ready=[o for o in prog if o.np==0 and o.kind!="M"]
    out=[]
    gapof={}
    cyc=0; over=0; stats={}; hist={}
    def release(o):
        for c,_,_ in o.succs:
            c.np-=1
            if c.np==0 and c.kind!="M": ready.append(c)
    lgaps=[]; tgaps=[]; lastw_gap=[-100]; lastv_gap=[-100]
    byhd={}
    for o in prog:
        if o.kind!="M": byhd.setdefault(o.hd,[]).append(o)
    wp=0
    for g in range(-1,N):
        if g>=0:
            m=ms[g]; assert m.np==0, (m.text,[p.text for p,_,_ in m.preds if p.pos is None])
            m.pos=wp; wp+=1; out.append(m); gapof[m.id]=g; release(m)
        cur=[]
        used=(ms[g].cost-8 if g>=0 else 0); sfree=True; late=[]
        base=wp
        def place(o):
            nonlocal used,sfree
            ready.remove(o); cur.append(o); gapof[o.id]=g; o.pos=-2
            if o.kind=="W": lastw_gap[0]=g
            if o.kind=="L": lgaps.append(g)
            if o.kind=="T": tgaps.append(g)
            if o.kind in "LTX": lastv_gap[0]=g
            if o.kind=="S" and sfree: sfree=False
            else: used+=o.cost
            release(o)
        def ok(o,ign_ws=False):
            if o.earliest is not None and g<o.earliest: return False
            if o.tag=="q0" and g<o.dl-1: return False
            if o.kind=="L":
                if g<o.dl-VM_EARLY: return False
                if lgaps and g-lgaps[-1]<L_SPACE: return False
                if len(lgaps)>=4 and g-lgaps[-4]<L_WINDOW and g<o.dl-8: return False
            if o.kind=="T" and len(tgaps)>=2 and g-tgaps[-2]<T_WINDOW and g<o.dl: return False
            if o.kind=="W" and g-lastw_gap[0]<W_SPACE: return False
            if o.kind in "LT" and g-lastv_gap[0]<V_SPACE: return False
            for p,ws,raw in o.preds:
                pg=gapof[p.id]
                if p.kind=="M":
                    if ws and not ign_ws and (base-p.pos-1+sum(1 for x in cur if RANK[x.kind]<=RANK[o.kind]))<ws: return False
                else:
                    if pg==g:
                        if ign_ws and p.kind not in "DLXW": continue
                        if RANK[p.kind]>RANK[o.kind] or ws or (raw and p.kind in "DLXW"): return False
                    else:
                        if raw and p.kind=="D" and g-pg<DS_LAT: return False
                        if raw and p.kind=="W" and g-pg<W_LAT: return False
                        if raw and p.kind in "LX" and g-pg<(p.lat if p.lat is not None else VM_LAT): return False
                        if ws and not ign_ws and (base-p.pos-1+sum(1 for x in cur if RANK[x.kind]<=RANK[o.kind]))<ws: return False
            return True
        last = (g==N-1)
        key=lambda x:(x.kind not in "WT",x.pr-(L_PRIO if x.kind=="L" else 0),x.id)
        while True:
            if g<0: break
            cands=[o for o in ready if ((o.kind=="S" and sfree) or used+o.cost<=CAP or used==0) and ok(o)]
            if not cands: break
            o=min(cands,key=key)
            if PAIRUP and used==0 and o.cost==4 and o.kind!="S" and o.dl>g:
                small=[x for x in cands if x.cost==4 and x.kind!="S" and x is not o]
                chain=[c for c,ws,raw in o.succs if c.kind!="M" and c.np==1 and c.cost==4 and not ws and RANK[c.kind]>=RANK[o.kind] and o.kind not in "DLXW"]
                big=[x for x in cands if x.cost==8]
                if not small and not chain and big: o=min(big,key=key)
            place(o)
        while g>=0 and LATE_OVERFLOW:
            cands=[o for o in ready if o.dl<=g and ok(o)]
            if not cands: break
            o=min(cands,key=lambda x:(x.dl,x.id)); place(o); late.append(o)
        cur.sort(key=lambda x:RANK[x.kind])
        forced=[]
        while True:
            f=[o for o in ready if o.hd<=g or last]
            if not f: break
            o=min(f,key=lambda x:x.id)
            ready.remove(o); forced.append(o); gapof[o.id]=g; used+=o.cost; release(o)
        if PADNOP and g>=0 and not last and used<CAP and not forced:
            if any(ok(o,True) and not ok(o) for o in ready):
                n=(CAP-used)//4
                nop=Op(f"s_nop {n-1}","N",cost=4*n); nop.id=-1
                forced=[nop]; used+=4*n
        for o in cur+forced:
            o.pos=wp; out.append(o); wp+= (o.cost//4 if o.kind=="N" else 1)
        if g>=0:
            c=max(16,8+used); cyc+=c
            if c>16 and not last:
                over+=c-16
                hist[g//68]=hist.get(g//68,0)+c-16
                for o in forced+late: stats[o.tag]=stats.get(o.tag,0)+o.cost
    assert all(o.pos is not None for o in prog)
    if verbose: print(f"sched: {N} mfma, est cycles {cyc}, overflow {over}, forced by tag {stats}\n  overflow per 68 mfma: {hist}")
    return out

def finalize(lin, after_mfma_waits=True):
    ins={}
    dsq=[]; vmq=[]
    ds_done=0; vm_done=0
    pend={}
    lastm=-1
    mc=[0]*(len(lin)+1)
    for i,o in enumerate(lin): mc[i+1]=mc[i]+(o.kind=="M")
    for i,o in enumerate(lin):
        need_ds=-1; need_vm=-1
        for r in o.rd+o.rc+o.wr:
            if r in pend:
                k,s=pend[r]
                if k=="ds" and s>=ds_done: need_ds=max(need_ds,s)
                if k=="vm" and s>=vm_done: need_vm=max(need_vm,s)
        for k,need,q in (("ds",need_ds,dsq),("vm",need_vm,vmq)):
            if need<0: continue
            p=i
            if after_mfma_waits and lastm>=0 and q[need]<lastm: p=lastm+1
            if after_mfma_waits:
                age=DS_AGE if k=="ds" else VM_AGE
                while need+1<len(q) and q[need+1]<p and mc[p]-mc[q[need+1]]>=age and lin[q[need+1]].kind!="T": need+=1
            n=sum(1 for x in q[need+1:] if x<p)
            n=min(n,15 if k=="ds" else 63)
            w=ins.setdefault(p,[None,None]); j=1 if k=="ds" else 0
            w[j]=n if w[j] is None else min(w[j],n)
            if k=="ds": ds_done=need+1
            else: vm_done=need+1
        if o.kind=="B":
            if "lgkmcnt(0)" in o.text: ds_done=len(dsq)
            if "vmcnt(0)" in o.text: vm_done=len(vmq)
        if o.kind in ("D","W"):
            dsq.append(i)
            for r in o.wr:
                if r[0]!="@": pend[r]=("ds",len(dsq)-1)
        if o.kind in ("L","T","X"):
            vmq.append(i)
            if o.kind in ("L","X"):
                for r in o.wr:
                    if r[0]!="@": pend[r]=("vm",len(vmq)-1)
        if o.kind=="M": lastm=i
    lin2=[]
    for i,o in enumerate(lin):
        if i in ins:
            vm,lg=ins[i]
            t="s_waitcnt"+(f" vmcnt({vm})" if vm is not None else "")+(f" lgkmcnt({lg})" if lg is not None else "")
            lin2.append(Op(t,"S"))
        lin2.append(o)
    out=[]; cnt=0
    lastw={}; readers={}
    nnop=0
    for o in lin2:
        need=0
        for r in o.rd+o.rc:
            if r in lastw:
                p,pp=lastw[r]; need=max(need,req_ws(p,o,"RAW",r)-(cnt-pp-1))
        for r in o.wr:
            if r in lastw:
                p,pp=lastw[r]; need=max(need,req_ws(p,o,"WAW",r)-(cnt-pp-1))
            for p,pp in readers.get(r,()):
                need=max(need,req_ws(p,o,"WAR",r)-(cnt-pp-1))
        if need>0:
            out.append(f"s_nop {need-1}"); cnt+=need; nnop+=1
        out.append(o.text)
        for r in o.rd+o.rc:
            l=readers.setdefault(r,[]); l.append((o,cnt))
            if len(l)>4: del l[0]
        for r in o.wr:
            lastw[r]=(o,cnt); readers[r]=[]
        cnt+= (o.cost//4 if o.kind=="N" else 1)
    return out,nnop
```

```python
import sys
import numpy as np
import gen as G
from gen import *
vB0=248; vB1=249; vB2=250
vKF=251
vKD=252; vVD=253; vVR=254; vVW=255
vHS=252
sKb=36; sVb=37; sLw=38; sD0=39; sD1=40; sD2=41; sD3=42
def lds_addr(off): return (vB0,vB1,vB2)[off>>16], off&0xffff
G.lds_addr=lds_addr
def k_lds(s,j): return 65536+s*8192+j*512
def v_lds(s,b): return s*8192+b*512
G.k_lds=k_lds; G.v_lds=v_lds

P=dict(order=["K0","Q0","V0","Q1","K1","V1","Q2","Q3","K2","V2","K3","V3","K4","V4","K5","V5"],
       head=[(0,0),(0,1),(1,0),(1,1),(0,2),(1,2),(0,3),(1,3),(2,0),(2,1),(2,2),(2,3),(3,0),(3,1),(3,2),(3,3)],
       drain=[(1,0),(2,0),(3,0)],
       npre=10, ahead=6, chunk=30, xs=[12,28,63], xt=[0,50,50+35*11], early_blocks=8,
       seq=[("fv0",0,8,10),("fk1",30,40,50),("fv1",50,60,66),("fk2",0,170,225),("fv2",0,215,250),
            ("fk3",0,262,355),("fv3",0,345,386),("fk4",0,398,491),("fv4",0,481,522),("fk5",0,534,627),("fv5",0,617,658)], merge=2,
       warm=[('x',6,list(range(1,13))),('m',2000,list(range(13,30)))], hnear=[(1,1)], endsp=[30,21,9], endoff=12, dma_lat=45, OFF=[0,3,6,9], wcost=20)
QREG={0:65536+5*16384,1:65536+4*16384,2:3*16384,3:65536+3*16384}
QHOST={"K5":0,"K4":1,"V3":2,"K3":3}
vQD=vO+120; vQR=vO+121; vQR2=vO+122

def dma_ops(blk):
    kind,g=blk[0],int(blk[1]); bi=P["order"].index(blk)
    groups=[]
    extra=[]
    if kind=="V" and g>=4: extra+=(["pubV2"] if P.get("prefix") else [f"pubV{g-4}"])
    if blk in QHOST: extra+=R("a",aQ+16*QHOST[blk],16)
    for a in range(4):
        ops=[]
        if kind=="Q":
            srd,vo,reg=sQ,vQD,QREG[g]; imm=(a//2)*512+(a%2)*128; so=sQo
            if a==0: ops.append(soff(sQo,g))
        else:
            sb = sKb if kind=="K" else sVb
            s0,s1 = (sD0,sD1) if kind=="K" else (sD2,sD3)
            srd = sK if kind=="K" else sV
            vo = vKD if kind=="K" else vVD
            reg = (65536 if kind=="K" else 0)+g*16384
            imm=(a%2)*(128 if kind=="K" else 512); so=(s0,s1)[a//2]
            if a%2==0: ops.append(Op(f"s_add_u32 s{so}, s{sb}, {g*16384+(a//2)*4096}","S",rd=[f"s{sb}"],wr=[f"s{so}","scc"],tag="dma"))
        ops.append(Op(f"s_add_u32 m0, s{sLw}, {reg+a*1024-imm}","S",rd=[f"s{sLw}"],wr=["m0","scc"],tag="dma"))
        ops.append(Op(f"buffer_load_dwordx4 v{vo}, s[{srd}:{srd+3}], s{so} offen offset:{imm}{LDNT} lds","X",
                      rd=[f"v{vo}","m0",f"s{so}"]+extra,wr=[f"raw{blk}_{a}",f"@x{4*bi+a}"],tag="dma",lat=(0 if bi<P["early_blocks"] else P["dma_lat"])))
        groups.append(ops)
    return groups
def ahead(blk):
    if P['order'].index(blk)>=P["early_blocks"]: return []
    return [f"@x{min(4*P['order'].index(blk)+3+P['ahead'],63)}"]
def q0_reads(t):
    ops=[]
    reg=QREG[t]; v=vQR if reg<65536 else vQR2
    off=reg if reg<65536 else reg-98304
    for ks in range(4):
        d=aQ+16*t+4*ks
        ops.append(Op(f"ds_read_b128 {rng('a',d,4)}, v{v} offset:{off+512*ks}","D",rd=[f"v{v}",f"rawQ{t}_{ks//2}",f"rawQ{t}_{2+ks//2}"]+ahead(f"Q{t}"),wr=R("a",d,4),tag="q0"))
    return ops

def fix_k(g,earliest=None):
    ops=[]
    if g==4: ops.append(valu(f"v_add_u32 v{vKF}, 0x10000, v{vKF}",[f"v{vKF}"],[f"v{vKF}"],tag="fix"))
    off=(g%4)*16384
    for a in range(4):
        d=vST+4*a
        ops.append(Op(f"ds_read_b128 {rng('v',d,4)}, v{vKF} offset:{off+1024*a}","D",rd=[f"v{vKF}",f"rawK{g}_{a}"]+ahead(f"K{g}"),wr=R("v",d,4),tag="fix",earliest=earliest))
    for a in range(4):
        d=vST+4*a
        for e in range(4):
            x=d+e; t0=vT+2*(e%2); t1=t0+1
            ops.append(valu(f"v_lshlrev_b32 v{t0}, 16, v{x}",[f"v{x}"],[f"v{t0}"],tag="fix"))
            ops.append(valu(f"v_and_b32 v{t1}, 0xffff0000, v{x}",[f"v{x}"],[f"v{t1}"],tag="fix"))
            ops.append(valu(f"v_mul_f32 v{t0}, s{sC}, v{t0}",[f"v{t0}"],[f"v{t0}"],tag="fix"))
            ops.append(valu(f"v_mul_f32 v{t1}, s{sC}, v{t1}",[f"v{t1}"],[f"v{t1}"],tag="fix"))
            ops.append(valu(f"v_cvt_pk_bf16_f32 v{x}, v{t0}, v{t1}",[f"v{t0}",f"v{t1}"],[f"v{x}"],tag="fix"))
        ops.append(Op(f"ds_write_b128 v{vKF}, {rng('v',d,4)} offset:{off+1024*a}","W",rd=R("v",d,4)+[f"v{vKF}"],wr=[f"fixK{g}_{a}"],tag="fix",cost=P["wcost"]))
    return ops
def fix_v(g,earliest=None):
    ops=[]
    if g==4:
        ops.append(valu(f"v_add_u32 v{vVR}, 0x10000, v{vVR}",[f"v{vVR}"],[f"v{vVR}"],tag="fix"))
        ops.append(valu(f"v_add_u32 v{vVW}, 0x10000, v{vVW}",[f"v{vVW}"],[f"v{vVW}"],tag="fix"))
    off=(g%4)*16384
    for i in range(8):
        d=vST+16+2*i
        ops.append(Op(f"ds_read_b64 {rng('v',d,2)}, v{vVR} offset:{off+512*i}","D",rd=[f"v{vVR}",f"rawV{g}_{i//2}"]+ahead(f"V{g}"),wr=R("v",d,2),tag="fix",earliest=earliest))
    for q in range(4):
        t=vLS; e,par=q//2,q%2
        for tt in range(4):
            lo=vST+16+2*(2*tt)+e; hi=vST+16+2*(2*tt+1)+e
            ops.append(valu(f"v_perm_b32 v{t+tt}, v{hi}, v{lo}, s{sPH if par else sPL}",[f"v{hi}",f"v{lo}"],[f"v{t+tt}"],tag="fix"))
        ops.append(Op(f"ds_write_b128 v{vVW}, {rng('v',t,4)} offset:{off+512*q}","W",rd=R("v",t,4)+[f"v{vVW}"],wr=[f"fixV{g}_{q}"],tag="fix",cost=P["wcost"]))
    return ops
def barrier(rd,wr): return Op("s_barrier","B",rd=list(rd)+["bar"],wr=list(wr)+["bar"],tag="bar")

def main_prog():
    OFF=P["OFF"]
    units=[]
    for tau in range(12*6+OFF[3]):
        for t in range(4):
            if tau<12: p,k=0,tau
            else:
                x=tau-OFF[t]
                if x<12 or x>=72: continue
                p,k=x//12,x%12
            units.append(dict(t=t,p=p,tau=tau,s=tau%12,first=(k==0),last=(k==11)))
    if P.get("head"):
        n=len(P["head"]); idx={(u["t"],u["tau"]):u for u in units[:n]}
        units[:n]=[idx[x] for x in P["head"]]
    nU=len(units)
    for i,u in enumerate(units):
        u["i"]=i; u["newstep"]= (i==0 or units[i-1]["tau"]!=u["tau"])
        u["drain"]= u["p"]==0 and (u["t"],u["tau"]) in P.get("drain",())
        par=u["t"]%2
        u["pb"]= par if (i==0 or units[i-1]["pb"]!=par) else 1-par
        if i+1<nU and par==0 and units[i+1]["t"]==u["t"]+1: u["pb"]=0
    for i,u in enumerate(units):
        v=units[i+1] if i+1<nU else None
        if P.get("smf",1) and v and u["t"]%2==0 and v["t"]==u["t"]+1 and u["pb"]==0 and v["pb"]==1:
            u["paired"]=0; v["paired"]=1
    prog=[]
    qbuf={}
    pending=[(t,p) for p in range(1,6) for t in range(4)]
    def emit_qload(tp,buf,**kw):
        qbuf[tp]=buf
        ops=qloads(soff(sQo,4*tp[1]+tp[0]),buf[0],buf[1])
        for o in ops:
            for k,v in kw.items(): setattr(o,k,v)
        prog.extend(ops)
    def pre(ops):
        for o in ops: o.due=-1
        prog.extend(ops)
    def pubK(g):
        ops=[barrier([f"fixK{g}_{a}" for a in range(4)],[f"pubK{g}"])]
        if g<2:
            for s in (2*g,2*g+1):
                for j in range(8): ops.append(dsread("a",aKR+32*s+4*j,k_lds(s,j),"kr",[f"pubK{g}"]))
        return ops
    def pubV(g):
        rd=[f"fixV{g}_{a}" for a in range(4)]
        if g<2: rd+=R("a",aKR+64*g,64)
        if g==2: rd+=R("a",aKR,128)
        return [barrier(rd,[f"pubV{g}"])]
    def codepf():
        return [Op(f"global_load_dword v{vLS}, v{vLS+3}, s[52:53]","L",rd=[f"v{vLS+3}"],wr=[f"v{vLS}"],tag="pf")]
    for t in range(4): qbuf[(t,0)]=("a",aQ+16*t)
    xg=[]
    for blk in P["order"]: xg+= [(blk,g) for g in dma_ops(blk)]
    for _ in range(P["npre"]): pre(xg.pop(0)[1])
    if P.get('pf','first')=='mid': pre(codepf())
    if P.get("prefix"):
        work=[]
        for it in P["prefix"]:
            if it=="bar":
                work.append(barrier([f"fix{k}{g}_{a}" for k in "KV" for g in (0,1) for a in range(4)],["pubK0","pubK1","pubV0","pubV1"]))
                for s_ in range(4):
                    for j in range(8): work.append(dsread("a",aKR+32*s_+4*j,k_lds(s_,j),"kr",["pubK0"]))
            else: work+= (fix_k if it[1]=="k" else fix_v)(int(it[2]))
    else: work=fix_k(0)+pubK(0)
    k=0
    for o in work:
        need=[int(r[2:]) for r in o.rd if r.startswith("@x")]
        while need and 64-len(xg)<=max(need): pre(xg.pop(0)[1]); k=0
        pre([o]); k+=1
        if k>=P["chunk"] and 64-len(xg)<P.get("premax",64): pre(xg.pop(0)[1]); k=0
    def item_ops(item,e=None):
        g=int(item[-1])
        if g>=P["merge"]:
            if item[:2]=="fk": return fix_k(g,e)
            return fix_v(g,e)+[barrier([f"fixK{g}_{a}" for a in range(4)]+[f"fixV{g}_{a}" for a in range(4)]+(R("a",aKR,128) if g==2 else []),[f"pubK{g}",f"pubV{g}"])]
        if item[:2]=="fk": return fix_k(g,e)+pubK(g)
        if item[:2]=="fv": return fix_v(g,e)+pubV(g)
    xn=[0]
    def issue_upto(bi):
        while xg and 64-len(xg)<=bi:
            blk,ops=xg.pop(0)
            e=int(np.interp(64-len(xg)-1,P["xs"],P["xt"])); xn[0]+=1
            for o in ops:
                o.due=e+2
                if o.kind=="X": o.earliest=e
            prog.extend(ops)
    cons=[]
    for t in range(4): cons.append((P["order"].index(f"Q{t}"),("q",t)))
    for it in P["seq"]: cons.append((P["order"].index(it[0][1].upper()+it[0][2]),it))
    cons.sort(key=lambda x:x[0])
    for bi,it in cons:
        issue_upto(4*bi+3+P["ahead"])
        if it[0]=="q": prog.extend(q0_reads(it[1])); continue
        item,e=it[0],it[1]
        ops=item_ops(item,e)
        fx=[o for o in ops if o.tag in ("fix","bar")]
        for k,o in enumerate(fx): o.due=int(it[2]+(it[3]-it[2])*(k+1)/len(fx))
        prog.extend(ops)
    assert not xg
    emit_qload(pending.pop(0),("v",vQL))
    if P.get("otouch"):
        prog.append(Op(f"buffer_load_dword v{vL+11}, v{vA0}, s[{sO}:{sO+3}], s{sQB} offen nt","X",rd=[f"v{vA0}"],wr=[f"v{vL+11}"],tag="pf",earliest=P["otouch"],due=P["otouch"]+2))
    if P.get("pf2"):
        for k,e in enumerate(P["pf2"]):
            prog.append(Op(f"v_add_u32 v{vKD}, 0x8000, v{vKD}" if k else f"v_lshl_add_u32 v{vKD}, v{vA0}, 3, s55","V",rd=[f"v{vKD}",f"v{vA0}"],wr=[f"v{vKD}"],tag="pf",earliest=e-4,due=e))
            prog.append(Op(f"global_load_dword v{vVD}, v{vKD}, s[52:53]","L",rd=[f"v{vKD}"],wr=[f"v{vVD}"],tag="pf",earliest=e,due=e+2))
    def chain(u,kb,d,c):
        qb=qbuf[(u["t"],u["p"])]
        for ks in range(4):
            prog.append(mfma(d,kfrag(u["s"],4*kb+ks),(qb[0],qb[1]+4*ks), c if ks==0 else d, tag="qk"))
    def kloads(u):
        if u["newstep"] and u["s"]>=NRES and not u.get("kl"):
            u["kl"]=True
            for j in range(8): prog.append(dsread("a",aKF+4*j,k_lds(u["s"],j),"kf",[f"pubK{u['s']//2}"]))
    def hoist(u):
        c=vC+4*u["t"]; sb=vS+8*(u["i"]%2)
        if u["p"]>=1 and P.get("hs",1):
            chain(u,0,vHS,None)
            prog.extend(max_ops(vHS))
            for r in range(4): prog.append(valu(f"v_mov_b32 v{c+r}, v{vM0}",[f"v{vM0}"],[f"v{c+r}"],tag="max"))
            for r in range(4): prog.append(valu(f"v_add_f32 v{vHS+r}, v{vHS+r}, v{vM0}",[f"v{vHS+r}",f"v{vM0}"],[f"v{vHS+r}"],tag="max"))
            u["post"]=[]; u["lo"]=vHS
        else:
            chain(u,0,c,None)
            u["post"]=max_ops(c)
            for r in range(4): u["post"].append(valu(f"v_add_f32 v{sb+r}, v{c+r}, v{vM0}",[f"v{c+r}",f"v{vM0}"],[f"v{sb+r}"],tag="max"))
            for r in range(4): u["post"].append(valu(f"v_mov_b32 v{c+r}, v{vM0}",[f"v{vM0}"],[f"v{c+r}"],tag="max"))
        u["hoisted"]=True
    hoist(units[0])
    def do_qk(nx,n2):
        if nx: kloads(nx)
        n3=units[nx["i"]+2] if nx and nx["i"]+2<nU else None
        if P.get("hdist",2)>=2 and n3 and n3["first"] and n3["p"]>=1 and not n3.get("hoisted") and (n3["s"]<NRES or n3["tau"]==nx["tau"]) \
           and nx["t"]!=n3["t"] and n2["t"]!=n3["t"] and (n3["t"],n3["p"]) not in P.get("hnear",()):
            hoist(n3)
        if n2 and n2["first"] and not n2.get("hoisted") and not n2["drain"]:
            assert n2["s"]<NRES or n2["tau"]==nx["tau"], n2
            hoist(n2)
        if nx:
            c=vC+4*nx["t"]; sb=vS+8*(nx["i"]%2)
            if nx["first"]:
                if not nx.get("hoisted"): hoist(nx)
                prog.extend(nx["post"])
                chain(nx,1,sb+4,c)
            else:
                chain(nx,0,sb,c); chain(nx,1,sb+4,c)
            if nx["last"] and pending:
                emit_qload(pending.pop(0),qbuf[(nx["t"],nx["p"])])
    defer=[]; ofree=[vO,vO+32,vO+64,vO+96,vST]; obuf={}
    def do_pv(i):
        if i<0: return
        u=units[i]; t=u["t"]; pb=vP+4*u["pb"]
        if u["newstep"]:
            for b in range(8): prog.append(dsread("a",aVF+4*b,v_lds(u["s"],b),"vf",[f"pubV{u['s']//2}"]))
        if "paired" not in u: prog.append(lsum_dense(t,pb))
        elif u["paired"]==1:
            prog.append(lsum_pair(t//2))
            prog.extend(defer); defer.clear()
        if u["first"]: obuf[t]=ofree.pop(0)
        for b in range(8):
            o=obuf[t]+4*b
            prog.append(mfma(o,("v",pb),("a",aVF+4*b),None if u["first"] else o,tag="pv"))
        if u["last"]:
            idx=4*u["p"]+t
            G.P_X[0]=vLS+t
            e0,e1=epilogue(obuf[t], t, soff(sOo,idx), idx)
            if u["p"]==5 and t<3:
                cm=sum(1 for o in prog if o.kind=="M"); sp=P["endsp"][t]; k=0
                for o in e1:
                    if o.kind=="T": k+=1; o.due=cm+P["endoff"]+k*sp
            dst = defer if u.get("paired")==0 else prog
            dst.extend(e0); dst.extend(e1)
            ofree.append(obuf[t])
    for i in range(-1,nU):
        nx=units[i+1] if i+1<nU else None
        n2=units[i+2] if i+2<nU else None
        if nx and nx["drain"]:
            do_pv(i); do_qk(nx,n2)
        else:
            do_qk(nx,n2); do_pv(i)
        if nx:
            prog.extend(sm_ops(vS+8*(nx["i"]%2), vP+4*nx["pb"], lo=nx.get("lo")))
    return prog

def setup_text():
    REMAP=""" s_and_b32 s3, s2, 7
 s_lshl_b32 s3, s3, 5
 s_lshr_b32 s4, s2, 3
 s_or_b32 s3, s3, s4
""" if P.get("remap",1) else " s_mov_b32 s3, s2\n"
    PF=f" global_load_dword v{vM1}, v{vM0}, s[52:53]\n" if P.get("pf","first")=="first" else ""
    return f"""
 s_cmp_ge_u32 s2, 256
 s_cbranch_scc1 L_end
 s_load_dwordx4 s[44:47], s[0:1], 0
 s_load_dwordx4 s[48:51], s[0:1], 16
{REMAP} s_getpc_b64 s[52:53]
 v_and_b32 v1, 63, v0
 v_lshrrev_b32 v2, 6, v0
 v_lshlrev_b32 v{vA0}, 4, v1
 v_readfirstlane_b32 s{sW}, v2
 s_lshr_b32 s54, s2, 3
 s_lshl_b32 s54, s54, 2
 s_add_u32 s54, s54, s{sW}
 s_mul_i32 s55, s54, 5042
 s_lshr_b32 s55, s55, 16
 s_mul_i32 s55, s55, 13
 s_sub_u32 s54, s54, s55
 s_lshl_b32 s54, s54, 13
 v_lshl_add_u32 v{vM0}, v1, 7, s54
{PF} s_lshl_b32 s55, s{sW}, 13
 s_add_u32 s55, s55, {P.get('pf2base',8192)}
 v_and_b32 v3, 15, v1
 v_lshrrev_b32 v4, 4, v1
 v_and_b32 v7, 7, v1
 v_lshrrev_b32 v8, 3, v1
 v_lshlrev_b32 v5, 8, v7
 v_lshl_add_u32 v{vKD}, v8, 4, v5
 v_and_b32 v5, 3, v8
 v_lshrrev_b32 v6, 5, v1
 v_lshl_add_u32 v5, v5, 2, v6
 v_lshlrev_b32 v5, 8, v5
 v_lshl_add_u32 v{vVD}, v7, 4, v5
 s_mul_i32 s{sKV}, s3, 98304
 s_lshr_b32 s{sTmp}, s{sW}, 1
 s_lshl_b32 s{sTmp}, s{sTmp}, 13
 s_add_u32 s{sKV}, s{sKV}, s{sTmp}
 s_and_b32 s{sTmp}, s{sW}, 1
 s_lshl_b32 s{sKb}, s{sTmp}, 11
 s_add_u32 s{sKb}, s{sKb}, s{sKV}
 s_lshl_b32 s{sVb}, s{sTmp}, 7
 s_add_u32 s{sVb}, s{sVb}, s{sKV}
 s_lshl_b32 s{sLw}, s{sW}, 12
 s_mul_i32 s{sQB}, s3, 393216
 s_mul_i32 s{sTmp}, s{sW}, 98304
 s_add_u32 s{sQB}, s{sQB}, s{sTmp}
 v_and_b32 v5, 3, v3
 v_lshrrev_b32 v6, 2, v3
 v_lshl_add_u32 v5, v5, 2, v6
 v_lshlrev_b32 v5, 8, v5
 v_lshl_add_u32 v{vQO}, v4, 4, v5
 v_lshrrev_b32 v5, 3, v3
 v_lshlrev_b32 v5, 12, v5
 v_lshl_add_u32 v5, v4, 7, v5
 v_lshl_add_u32 v{vB0}, v7, 4, v5
 v_add_u32 v{vB1}, 0x10000, v{vB0}
 v_add_u32 v{vB2}, 0x20000, v{vB0}
 v_lshlrev_b32 v9, 12, v2
 v_add_u32 v{vKF}, v9, v{vA0}
 v_add_u32 v{vKF}, 0x10000, v{vKF}
 v_lshl_add_u32 v{vVR}, v1, 3, v9
 v_and_b32 v5, 1, v1
 v_lshl_add_u32 v5, v5, 11, v9
 v_lshl_add_u32 v5, v4, 7, v5
 v_lshrrev_b32 v6, 1, v3
 v_lshl_add_u32 v{vVW}, v6, 4, v5
 v_and_b32 v5, 3, v7
 v_lshrrev_b32 v6, 2, v7
 v_lshl_add_u32 v5, v5, 2, v6
 v_lshlrev_b32 v5, 8, v5
 v_lshl_add_u32 v{vQD}, v8, 4, v5
 v_lshrrev_b32 v5, 3, v3
 v_lshl_add_u32 v5, v5, 11, v9
 v_lshl_add_u32 v5, v4, 7, v5
 v_lshl_add_u32 v{vQR}, v7, 4, v5
 v_add_u32 v{vQR2}, 0x18000, v{vQR}
 v_bfe_u32 v5, v1, 1, 1
 v_lshrrev_b32 v6, 5, v1
 v_cmp_eq_u32 vcc, v5, v6
 v_mov_b32 v5, 0x3f803f80
 v_and_b32 v6, 3, v1
 v_cndmask_b32 v{vSPA}, 0, v5, vcc
 v_cndmask_b32 v{vSPA+1}, 0, v5, vcc
 v_cndmask_b32 v{vSPA+2}, 0, v5, vcc
 v_cndmask_b32 v{vSPA+3}, 0, v5, vcc
 v_cmp_eq_u32 vcc, 0, v6
 v_and_b32 v6, 1, v1
 v_mul_u32_u24 v6, 0xaaaa, v6
 v_cndmask_b32 v{vSEL}, 0, v5, vcc
 v_cndmask_b32 v{vSEL+1}, 0, v5, vcc
 v_cndmask_b32 v{vSEL+2}, 0, v5, vcc
 v_cndmask_b32 v{vSEL+3}, 0, v5, vcc
 v_or_b32 v{vIDX}, 0x4444, v6
 v_mov_b32 v{vL+0}, 0
 v_mov_b32 v{vL+1}, 0
 v_mov_b32 v{vL+2}, 0
 v_mov_b32 v{vL+3}, 0
 v_mov_b32 v{vL+4}, 0
 v_mov_b32 v{vL+5}, 0
 v_mov_b32 v{vL+6}, 0
 v_mov_b32 v{vL+7}, 0
 v_mov_b32 v{vL+8}, 0
 v_mov_b32 v{vL+9}, 0
 s_mov_b32 s{sC}, {CSCALE:#x}
 s_mov_b32 s{sTH}, {THRESH:#x}
 s_mov_b32 s{sFL}, 0
 s_mov_b32 s{sPL}, 0x05040100
 s_mov_b32 s{sPH}, 0x07060302
 s_mov_b32 s{sQ+2}, 100663296
 s_mov_b32 s{sQ+3}, 0x20000
 s_mov_b32 s{sK+2}, 25165824
 s_mov_b32 s{sK+3}, 0x20000
 s_mov_b32 s{sV+2}, 25165824
 s_mov_b32 s{sV+3}, 0x20000
 s_mov_b32 s{sO+2}, 100663296
 s_mov_b32 s{sO+3}, 0x20000
 s_waitcnt lgkmcnt(0)
 s_mov_b32 s{sQ}, s44
 s_mov_b32 s{sQ+1}, s45
 s_mov_b32 s{sK}, s46
 s_mov_b32 s{sK+1}, s47
 s_mov_b32 s{sV}, s48
 s_mov_b32 s{sV+1}, s49
 s_mov_b32 s{sO}, s50
 s_mov_b32 s{sO+1}, s51
"""
import post, re
def hook(mt):
    W=P.get("warm")
    if not W: return mt
    out=[]; nx=0; nm=0; todo=list(enumerate(W)); scc_live=False
    for x in mt:
        out.append(x)
        if x.endswith(" lds"): nx+=1
        if x.startswith("v_mfma") or x.startswith("v_smfmac"): nm+=1
        if todo:
            r,(kind,n,pages)=todo[0]
            if x.startswith("s_cmp"): scc_live=True
            if x.startswith("s_cselect"): scc_live=False
            if (kind=="x" and nx==n) or (kind=="m" and nm>=n and not scc_live and x.startswith("v_mfma")):
                out+=post.warm_text(r,sW); todo.pop(0)
    return out
def postf(path):
    W=P.get("warm")
    if not W: return
    s=open(path).read()
    tmp=re.sub(r"@E(\d+)_\d@",lambda m:f"L_wb{m.group(1)}",s)
    open(path,"w").write(tmp)
    sz=post.sizes(path)
    open(path,"w").write(s)
    post.sizes_orig=post.sizes
    post.sizes=lambda p: sz
    n=post.add_stubs(path,G.NAME,sW,nlines=P.get("nlines",1),rounds=[(None,w[2]) for w in W])
    post.sizes=post.sizes_orig
G.HOOK=hook; G.POST=postf
G.main_prog=main_prog; G.setup_text=setup_text; G.staging_v1=lambda: []
if __name__=="__main__":
    out=sys.argv[1] if len(sys.argv)>1 else "k2.s"
    if len(sys.argv)>2 and sys.argv[2]=="stamp": G.STAMP=True
    if len(sys.argv)>3: G.STAMP_AT=[int(x) for x in sys.argv[3].split(",")]
    G.gen(out)
    from build import build
    print(build(out))
```

```python
import sys, struct, math
from sched import *
NAME="standalone__gqa_softmax__near_ridge_kernel"
def f2u(x): return struct.unpack("<I",struct.pack("<f",x))[0]
CSCALE = f2u(math.log2(math.e)/math.sqrt(128.0))
THRESH = f2u(2.0**60)

vO=0; vL=128; vC=144; vS=160; vP=176; vST=184; vLS=216; vQL=220; vONE=236; vT=240
vA0=244; vA1=245; vA2=246; vQO=245; vM0=246; vM1=247
aQ=0; aKR=64; aKF=192; aVF=224
sQ,sK,sV,sO = 8,12,16,20
sW=24; sQB=25; sKV=26; sC=27; sTH=28; sFL=29; sPL=30; sPH=31; sQo=32; sOo=33; sTmp=34
NRES=4
MF="v_mfma_f32_16x16x32_bf16"
LDNT=""; STNT=" sc1"

def lds_addr(off):
    b=off>>16
    return (vA0,vA1,vA2)[b], off&0xffff
def k_lds(s,j): return 98304+(s-NRES)*8192+j*1024
def v_lds(s,b): return s*8192+b*1024

def mfma(d,a,b,c,tag=None):
    ct = "0" if c is None else rng("v",c,4)
    return Op(f"{MF} {rng('v',d,4)}, {rng(a[0],a[1],4)}, {rng(b[0],b[1],4)}, {ct}","M",
              rd=R(a[0],a[1],4)+R(b[0],b[1],4), wr=R("v",d,4), rc=[] if c is None else R("v",c,4), tag=tag)
def dsread(f,base,off,tag,extra=()):
    a,o=lds_addr(off)
    return Op(f"ds_read_b128 {rng(f,base,4)}, v{a} offset:{o}","D",rd=[f"v{a}"]+list(extra),wr=R(f,base,4),tag=tag)
def valu(text,rd,wr,kind="V",tag=None): return Op(text,kind,rd=rd,wr=wr,tag=tag)

def kfrag(s,j):
    return ("a", aKR+32*s+4*j) if s<NRES else ("a", aKF+4*j)

def qloads(idx_expr_op, dstf, dst, tag="ql", lat=None):
    ops=[idx_expr_op]
    for ks in range(4):
        ops.append(Op(f"buffer_load_dwordx4 {rng(dstf,dst+4*ks,4)}, v{vQO}, s[{sQ}:{sQ+3}], s{sQo} offen offset:{64*ks}{LDNT}","L",
                      rd=[f"v{vQO}",f"s{sQo}"],wr=R(dstf,dst+4*ks,4),tag=tag,lat=lat))
    return ops

def max_ops(c, tag="max"):
    a,b=vM0,vM1
    return [
      valu(f"v_max3_f32 v{a}, v{c}, v{c+1}, v{c+2}",R("v",c,3),[f"v{a}"],tag=tag),
      valu(f"v_max_f32 v{a}, v{a}, v{c+3}",[f"v{a}",f"v{c+3}"],[f"v{a}"],tag=tag),
      valu(f"v_mov_b32 v{b}, v{a}",[f"v{a}"],[f"v{b}"],tag=tag),
      valu(f"v_permlane16_swap_b32 v{a}, v{b}",[f"v{a}",f"v{b}"],[f"v{a}",f"v{b}"],"P",tag=tag),
      valu(f"v_max_f32 v{a}, v{a}, v{b}",[f"v{a}",f"v{b}"],[f"v{a}"],tag=tag),
      valu(f"v_mov_b32 v{b}, v{a}",[f"v{a}"],[f"v{b}"],tag=tag),
      valu(f"v_permlane32_swap_b32 v{a}, v{b}",[f"v{a}",f"v{b}"],[f"v{a}",f"v{b}"],"P",tag=tag),
      valu(f"v_min_f32 v{a}, -v{a}, -v{b}",[f"v{a}",f"v{b}"],[f"v{a}"],tag=tag),
    ]

vSPA=vONE; vSEL=vL+12; vIDX=vL+10
def acc_of(t): return vL+2*t
def epilogue(src, t, soff_op, flagbit, tag="epi"):
    a=acc_of(t); x=P_X[0]
    pre=[valu(f"v_add_f32 v{x}, v{a}, v{a+1}",[f"v{a}",f"v{a+1}"],[f"v{x}"],tag=tag),
         valu(f"v_mov_b32 v{a}, 0",[],[f"v{a}"],tag=tag),
         valu(f"v_mov_b32 v{a+1}, 0",[],[f"v{a+1}"],tag=tag)]
    ops=[]
    if flagbit is not None:
        ops+=[valu(f"v_cmp_nge_f32 vcc, s{sTH}, v{x}",[f"v{x}",f"s{sTH}"],["vcc"],tag=tag),
              Op("s_cmp_lg_u64 vcc, 0","S",rd=["vcc"],wr=["scc"],tag=tag),
              Op(f"s_cselect_b32 s{sTmp}, {1<<flagbit}, 0","S",rd=["scc"],wr=[f"s{sTmp}"],tag=tag),
              Op(f"s_or_b32 s{sFL}, s{sFL}, s{sTmp}","S",rd=[f"s{sFL}",f"s{sTmp}"],wr=[f"s{sFL}","scc"],tag=tag)]
    ops.append(valu(f"v_rcp_f32 v{x}, v{x}",[f"v{x}"],[f"v{x}"],"E",tag=tag))
    if BPERM[0]:
        ops.append(Op(f"ds_bpermute_b32 v{x}, v{vBP}, v{x}","D",rd=[f"v{x}",f"v{vBP}"],wr=[f"v{x}"],tag=tag))
    for g in range(1,4):
        if BPERM[0]: break
        ops.append(valu(f"v_mov_b32_dpp v{x}, v{x} row_shl:{4*g} row_mask:{1<<g:#x} bank_mask:0xf",[f"v{x}"],[f"v{x}"],"P",tag=tag))
    ops.append(soff_op)
    for r in range(4):
        for j in range(4):
            u,y=src+8*j+r, src+8*j+4+r
            for z in (u,y):
                ops.append(valu(f"v_mul_f32_dpp v{z}, v{x}, v{z} row_newbcast:{r} row_mask:0xf bank_mask:0xf",[f"v{z}",f"v{x}"],[f"v{z}"],"P",tag=tag))
            ops.append(valu(f"v_cvt_pk_bf16_f32 v{vT+j}, v{u}, v{y}",[f"v{u}",f"v{y}"],[f"v{vT+j}"],tag=tag))
        ops.append(Op(f"buffer_store_dwordx4 {rng('v',vT,4)}, v{vA0}, s[{sO}:{sO+3}], s{sOo} offen offset:{1024*r}{STNT}","T",
                      rd=R("v",vT,4)+[f"v{vA0}",f"s{sOo}"],tag=tag,cost=20))
    return pre,ops
P_X=[vLS]
BPERM=[0]
vBP=vL+11
def lsum_dense(t,pb):
    a=acc_of(t)
    return mfma(a,("v",vSEL),("v",pb),a,tag="l")
def lsum_pair(k):
    a=vL+4*k
    o=Op(f"v_smfmac_f32_16x16x64_bf16 {rng('v',a,4)}, {rng('v',vSPA,4)}, {rng('v',vP,8)}, v{vIDX}","M",
         rd=R("v",vSPA,4)+R("v",vP,8)+[f"v{vIDX}"],wr=R("v",a,4),rc=R("v",a,4),tag="l",cost=12)
    return o

def sm_ops(sb,pb,tag="sm",lo=None):
    ops=[]
    for j in range(4):
        b = sb+2*j if (lo is None or j>=2) else lo+2*j
        for e in range(2):
            r=b+e
            ops.append(valu(f"v_exp_f32 v{r}, v{r}",[f"v{r}"],[f"v{r}"],"E",tag=tag))
        ops.append(valu(f"v_cvt_pk_bf16_f32 v{pb+j}, v{b}, v{b+1}",R("v",b,2),[f"v{pb+j}"],tag=tag))
    return ops

TSTRIDE=[4096]
def soff(reg, idx): return Op(f"s_add_u32 s{reg}, s{sQB}, {idx*TSTRIDE[0]}","S",rd=[f"s{sQB}"],wr=[f"s{reg}","scc"],tag="soff")

def main_prog():
    OFF=[0,3,6,9]
    units=[]
    for tau in range(12*6+OFF[3]):
        for t in range(4):
            if tau<12: p,k=0,tau
            else:
                x=tau-OFF[t]
                if x<12 or x>=72: continue
                p,k=x//12,x%12
            units.append(dict(t=t,p=p,tau=tau,s=tau%12,first=(k==0),last=(k==11)))
    nU=len(units)
    for i,u in enumerate(units):
        u["i"]=i; u["newstep"]= (i==0 or units[i-1]["tau"]!=u["tau"])
    land={}
    for p in range(1,6):
        for t in range(4): land[(t,p)]=("v",vQL)
    land[(1,1)]=("v",vST); land[(2,1)]=None; land[(3,1)]=None
    ql_order=[(t,p) for p in range(1,6) for t in range(4) if land[(t,p)]==("v",vQL)]
    prog=[]
    def emit_qload(t,p):
        l=land[(t,p)]
        if l is None: prog.extend(qloads(soff(sQo,4*p+t),"a",aQ+16*t))
        else: prog.extend(qloads(soff(sQo,4*p+t),l[0],l[1]))
    emit_qload(0,1); emit_qload(1,1)
    def chain(u,kb,d,c):
        for ks in range(4):
            prog.append(mfma(d,kfrag(u["s"],4*kb+ks),("a",aQ+16*u["t"]+4*ks), c if ks==0 else d, tag="qk"))
    def kloads(u):
        if u["newstep"] and u["s"]>=NRES and not u.get("kl"):
            u["kl"]=True
            for j in range(8): prog.append(dsread("a",aKF+4*j,k_lds(u["s"],j),"kf"))
    def hoist(u):
        c=vC+4*u["t"]; sb=vS+8*(u["i"]%2)
        chain(u,0,c,None)
        u["post"]=max_ops(c)
        for r in range(4): u["post"].append(valu(f"v_add_f32 v{sb+r}, v{c+r}, v{vM0}",[f"v{c+r}",f"v{vM0}"],[f"v{sb+r}"],tag="max"))
        for r in range(4): u["post"].append(valu(f"v_mov_b32 v{c+r}, v{vM0}",[f"v{vM0}"],[f"v{c+r}"],tag="max"))
        u["hoisted"]=True
    for t in range(4): hoist(units[t])
    for i in range(-1,nU):
        nx=units[i+1] if i+1<nU else None
        n2=units[i+2] if i+2<nU else None
        if nx: kloads(nx)
        if n2 and n2["first"] and not n2.get("hoisted"):
            assert n2["s"]<NRES or n2["tau"]==nx["tau"], n2
            hoist(n2)
        if nx:
            c=vC+4*nx["t"]; sb=vS+8*(nx["i"]%2)
            if nx["first"]:
                prog.extend(nx["post"])
                chain(nx,1,sb+4,c)
            else:
                chain(nx,0,sb,c); chain(nx,1,sb+4,c)
            if nx["last"] and nx["p"]<5:
                t,p=nx["t"],nx["p"]+1; l=land[(t,p)]
                if l is None: emit_qload(t,p)
                else:
                    for r in range(16):
                        prog.append(valu(f"v_accvgpr_write_b32 a{aQ+16*t+r}, v{l[1]+r}",[f"v{l[1]+r}"],[f"a{aQ+16*t+r}"],tag="qcp"))
                    if l==("v",vQL):
                        k=ql_order.index((t,p))
                        if k+1<len(ql_order): emit_qload(*ql_order[k+1])
        if i>=0:
            u=units[i]; t=u["t"]; pb=vP+4*(i%2)
            if u["newstep"]:
                for b in range(8): prog.append(dsread("a",aVF+4*b,v_lds(u["s"],b),"vf"))
            stage = u["last"] and 1<=u["p"]<5
            lo=vL+4*t
            prog.append(mfma(vLS if stage else lo,("v",pb),("v",vONE),None if u["first"] else lo,tag="l"))
            for b in range(8):
                o=vO+32*t+4*b
                prog.append(mfma(vST+4*b if stage else o,("v",pb),("a",aVF+4*b),None if u["first"] else o,tag="pv"))
            if u["last"]:
                idx=4*u["p"]+t
                prog.extend(epilogue(vST if stage else vO+32*t, vLS if stage else lo, soff(sOo,idx), idx))
        if nx:
            prog.extend(sm_ops(vS+8*(nx["i"]%2), vP+4*(nx["i"]%2)))
    return prog

def S(t,rd=(),wr=()): return Op(t,"S",rd=rd,wr=wr)
def Bar(t): return Op(t,"B")

def setup_text():
    return f"""
 s_cmp_ge_u32 s2, 256
 s_cbranch_scc1 L_end
 s_load_dwordx4 s[36:39], s[0:1], 0
 s_load_dwordx4 s[40:43], s[0:1], 16
 s_getpc_b64 s[44:45]
 v_lshlrev_b32 v1, 7, v0
 global_load_dword v250, v1, s[44:45]
 v_add_u32 v1, 0x8000, v1
 global_load_dword v251, v1, s[44:45]
 v_add_u32 v1, 0x8000, v1
 global_load_dword v252, v1, s[44:45]
 v_and_b32 v1, 63, v0
 v_lshrrev_b32 v2, 6, v0
 v_lshlrev_b32 v{vA0}, 4, v1
 v_readfirstlane_b32 s{sW}, v2
 v_add_u32 v{vA1}, 0x10000, v{vA0}
 v_add_u32 v{vA2}, 0x20000, v{vA0}
 v_and_b32 v3, 15, v1
 v_lshrrev_b32 v4, 4, v1
 v_and_b32 v5, 3, v3
 v_lshrrev_b32 v6, 2, v3
 v_lshl_add_u32 v5, v5, 2, v6
 v_lshlrev_b32 v5, 8, v5
 v_lshl_add_u32 v{vQO}, v4, 4, v5
 v_lshlrev_b32 v5, 8, v3
 v_lshl_add_u32 v253, v4, 4, v5
 v_lshlrev_b32 v5, 10, v4
 v_lshl_add_u32 v254, v3, 4, v5
 v_lshlrev_b32 v5, 13, v2
 v_add_u32 v255, v5, v{vA0}
 v_mov_b32 v{vONE}, 0x3f803f80
 v_mov_b32 v{vONE+1}, 0x3f803f80
 v_mov_b32 v{vONE+2}, 0x3f803f80
 v_mov_b32 v{vONE+3}, 0x3f803f80
 s_mov_b32 s{sC}, {CSCALE:#x}
 s_mov_b32 s{sTH}, {THRESH:#x}
 s_mov_b32 s{sFL}, 0
 s_mov_b32 s{sPL}, 0x05040100
 s_mov_b32 s{sPH}, 0x07060302
 s_mul_i32 s{sQB}, s2, 393216
 s_mul_i32 s{sKV}, s{sW}, 98304
 s_add_u32 s{sQB}, s{sQB}, s{sKV}
 s_mul_i32 s{sKV}, s2, 98304
 s_lshl_b32 s{sTmp}, s{sW}, 13
 s_add_u32 s{sKV}, s{sKV}, s{sTmp}
 s_waitcnt lgkmcnt(0)
 s_mov_b32 s{sQ}, s36
 s_mov_b32 s{sQ+1}, s37
 s_mov_b32 s{sQ+2}, 100663296
 s_mov_b32 s{sQ+3}, 0x20000
 s_mov_b32 s{sK}, s38
 s_mov_b32 s{sK+1}, s39
 s_mov_b32 s{sK+2}, 25165824
 s_mov_b32 s{sK+3}, 0x20000
 s_mov_b32 s{sV}, s40
 s_mov_b32 s{sV+1}, s41
 s_mov_b32 s{sV+2}, 25165824
 s_mov_b32 s{sV+3}, 0x20000
 s_mov_b32 s{sO}, s42
 s_mov_b32 s{sO+1}, s43
 s_mov_b32 s{sO+2}, 100663296
 s_mov_b32 s{sO+3}, 0x20000
"""

def staging_v1():
    ops=[]
    vW,vW1,vW2=255,192,193
    ops.append(valu(f"v_add_u32 v{vW1}, 0x10000, v{vW}",[f"v{vW}"],[f"v{vW1}"]))
    ops.append(valu(f"v_add_u32 v{vW2}, 0x20000, v{vW}",[f"v{vW}"],[f"v{vW2}"]))
    so=[46+i for i in range(6)]
    for g in range(3):
        for h in range(2):
            ops.append(S(f"s_add_u32 s{so[2*g+h]}, s{sKV}, {g*32768+h*4096}",wr=[f"s{so[2*g+h]}"]))
    def kload(g):
        for j in range(8):
            kb,ks=j//4,j%4; d=32*g+4*j
            ops.append(Op(f"buffer_load_dwordx4 {rng('v',d,4)}, v253, s[{sK}:{sK+3}], s{so[2*g+kb]} offen offset:{64*ks}{LDNT}","L",wr=R("v",d,4)))
    def vload(g):
        for i in range(8):
            d=96+32*g+4*i
            ops.append(Op(f"buffer_load_dwordx4 {rng('v',d,4)}, v254, s[{sV}:{sV+3}], s{so[2*g+i//4]} offen offset:{256*(i%4)}{LDNT}","L",wr=R("v",d,4)))
    kload(0); kload(1); kload(2)
    vload(0); vload(1)
    for t in range(4):
        ops.extend(qloads(soff(sQo,t),"a",aQ+16*t))
    def kproc(g):
        base,off=((vW1,0),(vW1,32768),(vW2,0))[g]
        for j in range(8):
            d=32*g+4*j
            for e in range(4):
                x=d+e; t0=194+2*(e%2); t1=t0+1
                ops.append(valu(f"v_lshlrev_b32 v{t0}, 16, v{x}",[f"v{x}"],[f"v{t0}"]))
                ops.append(valu(f"v_and_b32 v{t1}, 0xffff0000, v{x}",[f"v{x}"],[f"v{t1}"]))
                ops.append(valu(f"v_mul_f32 v{t0}, s{sC}, v{t0}",[f"v{t0}"],[f"v{t0}"]))
                ops.append(valu(f"v_mul_f32 v{t1}, s{sC}, v{t1}",[f"v{t1}"],[f"v{t1}"]))
                ops.append(valu(f"v_cvt_pk_bf16_f32 v{x}, v{t0}, v{t1}",[f"v{t0}",f"v{t1}"],[f"v{x}"]))
            ops.append(Op(f"ds_write_b128 v{base}, {rng('v',d,4)} offset:{off+1024*j}","W",rd=R("v",d,4)+[f"v{base}"]))
    def vproc(g):
        base,off=((vW,0),(vW,32768),(vW1,0))[g]
        r0=96+32*g
        for b in range(8):
            t=200+4*(b%2)
            for q in range(4):
                lo=r0+4*(2*q)+b//2; hi=r0+4*(2*q+1)+b//2
                ops.append(valu(f"v_perm_b32 v{t+q}, v{hi}, v{lo}, s{sPH if b%2 else sPL}",[f"v{hi}",f"v{lo}"],[f"v{t+q}"]))
            ops.append(Op(f"ds_write_b128 v{base}, {rng('v',t,4)} offset:{off+1024*b}","W",rd=R("v",t,4)+[f"v{base}"]))
    kproc(0)
    vload(2)
    kproc(1); kproc(2)
    ops.append(Bar("s_waitcnt lgkmcnt(0)")); ops.append(Bar("s_barrier"))
    for s in range(NRES):
        for j in range(8): ops.append(dsread("a",aKR+32*s+4*j,(8+s)*8192+1024*j,"kr"))
    vproc(0); vproc(1)
    ops.append(Bar("s_waitcnt lgkmcnt(0)")); ops.append(Bar("s_barrier"))
    vproc(2)
    ops.append(Bar("s_waitcnt vmcnt(0) lgkmcnt(0)")); ops.append(Bar("s_barrier"))
    return ops

def slow_path():
    ops=[]
    ops.append(S(f"s_mul_i32 s{sTmp}, s35, {TSTRIDE[0]}",wr=[f"s{sTmp}"]))
    ops.extend(qloads(S(f"s_add_u32 s{sQo}, s{sQB}, s{sTmp}",wr=[f"s{sQo}"]),"a",aQ))
    c=vC
    for r in range(2): ops.append(valu(f"v_mov_b32 v{acc_of(0)+r}, 0",[],[f"v{acc_of(0)+r}"]))
    def kl(s):
        if s>=NRES:
            for j in range(8): ops.append(dsread("a",aKF+4*j,k_lds(s,j),"kf"))
    def chain(s,kb,d,cc):
        for ks in range(4): ops.append(mfma(d,kfrag(s,4*kb+ks),("a",aQ+4*ks),cc if ks==0 else d))
    for s in range(12):
        kl(s); chain(s,0,vS,None); chain(s,1,vS+4,None)
        for r in range(4):
            if s==0: ops.append(valu(f"v_max_f32 v{c+r}, v{vS+r}, v{vS+4+r}",[f"v{vS+r}",f"v{vS+4+r}"],[f"v{c+r}"]))
            else: ops.append(valu(f"v_max3_f32 v{c+r}, v{c+r}, v{vS+r}, v{vS+4+r}",[f"v{c+r}",f"v{vS+r}",f"v{vS+4+r}"],[f"v{c+r}"]))
    ops.extend(max_ops(c))
    for r in range(4): ops.append(valu(f"v_mov_b32 v{c+r}, v{vM0}",[f"v{vM0}"],[f"v{c+r}"]))
    for s in range(12):
        kl(s)
        for b in range(8): ops.append(dsread("a",aVF+4*b,v_lds(s,b),"vf"))
        chain(s,0,vS,c); chain(s,1,vS+4,c)
        ops.extend(sm_ops(vS,vP))
        ops.append(lsum_dense(0,vP))
        for b in range(8): ops.append(mfma(vO+4*b,("v",vP),("a",aVF+4*b),None if s==0 else vO+4*b))
    P_X[0]=vLS
    e0,e1=epilogue(vO,0,S(f"s_mov_b32 s{sOo}, s{sQo}",rd=[f"s{sQo}"],wr=[f"s{sOo}"]),None)
    ops.extend(e0+e1)
    return ops

HEADER = open("standalone__gqa_softmax__near_ridge.s.ref").read().split("; @launch")[0]

NOTES=""";
"""
STAMP=False
HOOK=lambda mt: mt
POST=lambda path: None
STAMP_AT=408
ABL=lambda o: False
def stamp(k):
    if not STAMP: return []
    return [f"s_memtime s[60:61]",f"s_memrealtime s[62:63]","s_waitcnt lgkmcnt(0)",f"s_mov_b32 s{64+2*k}, s60",f"s_mov_b32 s{65+2*k}, s62"]
def stamp_store(n):
    if not STAMP: return ""
    t=" s_waitcnt vmcnt(0)\n"+"\n".join(" "+x for x in stamp(n-1))+"\n"
    t+=" s_load_dwordx2 s[56:57], s[0:1], 40\n s_waitcnt lgkmcnt(0)\n s_mov_b32 s58, 402653184\n s_mov_b32 s59, 0x20000\n"
    t+=f" s_lshl_b32 s60, s2, 2\n s_add_u32 s60, s60, s{sW}\n s_lshl_b32 s60, s60, 7\n v_mov_b32 v1, s60\n"
    for k in range(2*n):
        t+=f" v_mov_b32 v2, s{64+k}\n buffer_store_dword v2, v1, s[56:59], 0 offen offset:{4*k}\n"
    return t
def insert_stamps(mt, every, k0):
    if not STAMP: return mt,k0
    out=[];c=0;k=k0
    for x in mt:
        if x.startswith("v_mfma") or x.startswith("v_smfmac"):
            c+=1
            if (c in every if isinstance(every,(list,tuple)) else c%every==0):
                out+=["s_waitcnt lgkmcnt(0)"]+stamp(k); k+=1
        out.append(x)
    return out,k
def gen(path):
    st,n1=finalize(staging_v1(),False)
    mp=schedule(main_prog())
    mp=[o for o in mp if not ABL(o)]
    mt,n2=finalize(mp)
    sp,n3=finalize(slow_path(),False)
    print("nops",n1,n2,n3,"instrs",len(st),len(mt),len(sp))
    s=HEADER+"; @launch grid=(256,1,1) block=(256,1,1) lds=163840\n"+NOTES
    s+=f""".amdgcn_target "amdgcn-amd-amdhsa--gfx950"
.text
.globl {NAME}
.p2align 12
.p2align 8
.type {NAME},@function
{NAME}:"""
    mt,nk=insert_stamps(mt,STAMP_AT,2)
    mt=HOOK(mt)
    s+="\n"+"\n".join(" "+x for x in stamp(0))
    s+=setup_text()
    s+="\n".join(" "+x for x in st)+"\n"
    s+="\n".join(" "+x for x in stamp(1))+"\n"
    s+="\n".join((x if x.endswith(":") else " "+x) for x in mt)+"\n"
    s+=stamp_store(nk+1)
    s+=f"""L_slow:
 s_cmp_eq_u32 s{sFL}, 0
 s_cbranch_scc1 L_end
 s_waitcnt vmcnt(0) lgkmcnt(0)
 s_nop 15
 s_ff1_i32_b32 s35, s{sFL}
 s_bitset0_b32 s{sFL}, s35
"""
    s+="\n".join(" "+x for x in sp)+"\n"
    s+=""" s_branch L_slow
L_end:
 s_endpgm
; never executed: keeps the code-prefetch loads above inside .text
.fill 4096, 4, 0xbf810000
.section .rodata,"a"
.p2align 6
.amdhsa_kernel %s
  .amdhsa_next_free_vgpr 512
  .amdhsa_next_free_sgpr %d
  .amdhsa_accum_offset 256
  .amdhsa_group_segment_fixed_size 0
  .amdhsa_kernarg_size 48
  .amdhsa_user_sgpr_count 2
  .amdhsa_user_sgpr_kernarg_segment_ptr 1
  .amdhsa_system_sgpr_workgroup_id_x 1
.end_amdhsa_kernel
""" % (NAME, 100 if NAME!="standalone__gqa_softmax__near_ridge_kernel" or STAMP else 64)
    open(path,"w").write(s)
    POST(path)
if __name__=="__main__":
    out=sys.argv[1] if len(sys.argv)>1 else "k1.s"
    if len(sys.argv)>2 and sys.argv[2]=="stamp": STAMP=True
    gen(out)
    from build import build
    print(build(out))
```

```python
import sys
import numpy as np
import gen as G
from gen import *
vB0=248; vB1=249; vB2=250
vKF=251
vKD=252; vVD=253; vVR=254; vVW=255
vHS=252
sKb=36; sVb=37; sLw=38; sD0=39; sD1=40; sD2=41; sD3=42
def lds_addr(off): return (vB0,vB1,vB2)[off>>16], off&0xffff
G.lds_addr=lds_addr
def k_lds(s,j): return 65536+s*8192+j*512
def v_lds(s,b): return s*8192+b*512
G.k_lds=k_lds; G.v_lds=v_lds

P=dict(order=["K0","Q0","V0","Q1","K1","V1","Q2","Q3","K2","V2","K3","V3","K4","V4","K5","V5"],
       head=[(0,0),(0,1),(1,0),(1,1),(0,2),(1,2),(0,3),(1,3),(2,0),(2,1),(2,2),(2,3),(3,0),(3,1),(3,2),(3,3)],
       drain=[(1,0),(2,0),(3,0)],
       npre=10, ahead=6, chunk=30, xs=[12,28,63], xt=[0,50,50+35*11], early_blocks=8,
       seq=[("fv0",0,8,10),("fk1",30,40,50),("fv1",50,60,66),("fk2",0,170,225),("fv2",0,215,250),
            ("fk3",0,262,355),("fv3",0,345,386),("fk4",0,398,491),("fv4",0,481,522),("fk5",0,534,627),("fv5",0,617,658)], merge=2,
       warm=[('x',6,list(range(1,13))),('m',2000,list(range(13,30)))], hnear=[(1,1)], endsp=[30,21,9], endoff=12, dma_lat=45, OFF=[0,3,6,9], wcost=20)
QREG={0:65536+5*16384,1:65536+4*16384,2:3*16384,3:65536+3*16384}
QHOST={"K5":0,"K4":1,"V3":2,"K3":3}
vQD=vO+120; vQR=vO+121; vQR2=vO+122

def dma_ops(blk):
    kind,g=blk[0],int(blk[1]); bi=P["order"].index(blk)
    groups=[]
    extra=[]
    if kind=="V" and g>=4: extra+=(["pubV2"] if P.get("prefix") else [f"pubV{g-4}"])
    if blk in QHOST: extra+=R("a",aQ+16*QHOST[blk],16)
    for a in range(4):
        ops=[]
        if kind=="Q":
            srd,vo,reg=sQ,vQD,QREG[g]; imm=(a//2)*512+(a%2)*128; so=sQo
            if a==0: ops.append(soff(sQo,g))
        else:
            sb = sKb if kind=="K" else sVb
            s0,s1 = (sD0,sD1) if kind=="K" else (sD2,sD3)
            srd = sK if kind=="K" else sV
            vo = vKD if kind=="K" else vVD
            reg = (65536 if kind=="K" else 0)+g*16384
            imm=(a%2)*(128 if kind=="K" else 512); so=(s0,s1)[a//2]
            if a%2==0: ops.append(Op(f"s_add_u32 s{so}, s{sb}, {g*16384+(a//2)*4096}","S",rd=[f"s{sb}"],wr=[f"s{so}","scc"],tag="dma"))
        ops.append(Op(f"s_add_u32 m0, s{sLw}, {reg+a*1024-imm}","S",rd=[f"s{sLw}"],wr=["m0","scc"],tag="dma"))
        ops.append(Op(f"buffer_load_dwordx4 v{vo}, s[{srd}:{srd+3}], s{so} offen offset:{imm}{LDNT} lds","X",
                      rd=[f"v{vo}","m0",f"s{so}"]+extra,wr=[f"raw{blk}_{a}",f"@x{4*bi+a}"],tag="dma",lat=(0 if bi<P["early_blocks"] else P["dma_lat"])))
        groups.append(ops)
    return groups
def ahead(blk):
    if P['order'].index(blk)>=P["early_blocks"]: return []
    return [f"@x{min(4*P['order'].index(blk)+3+P['ahead'],63)}"]
def q0_reads(t):
    ops=[]
    reg=QREG[t]; v=vQR if reg<65536 else vQR2
    off=reg if reg<65536 else reg-98304
    for ks in range(4):
        d=aQ+16*t+4*ks
        ops.append(Op(f"ds_read_b128 {rng('a',d,4)}, v{v} offset:{off+512*ks}","D",rd=[f"v{v}",f"rawQ{t}_{ks//2}",f"rawQ{t}_{2+ks//2}"]+ahead(f"Q{t}"),wr=R("a",d,4),tag="q0"))
    return ops

def fix_k(g,earliest=None):
    ops=[]
    if g==4: ops.append(valu(f"v_add_u32 v{vKF}, 0x10000, v{vKF}",[f"v{vKF}"],[f"v{vKF}"],tag="fix"))
    off=(g%4)*16384
    for a in range(4):
        d=vST+4*a
        ops.append(Op(f"ds_read_b128 {rng('v',d,4)}, v{vKF} offset:{off+1024*a}","D",rd=[f"v{vKF}",f"rawK{g}_{a}"]+ahead(f"K{g}"),wr=R("v",d,4),tag="fix",earliest=earliest))
    for a in range(4):
        d=vST+4*a
        for e in range(4):
            x=d+e; t0=vT+2*(e%2); t1=t0+1
            ops.append(valu(f"v_lshlrev_b32 v{t0}, 16, v{x}",[f"v{x}"],[f"v{t0}"],tag="fix"))
            ops.append(valu(f"v_and_b32 v{t1}, 0xffff0000, v{x}",[f"v{x}"],[f"v{t1}"],tag="fix"))
            ops.append(valu(f"v_mul_f32 v{t0}, s{sC}, v{t0}",[f"v{t0}"],[f"v{t0}"],tag="fix"))
            ops.append(valu(f"v_mul_f32 v{t1}, s{sC}, v{t1}",[f"v{t1}"],[f"v{t1}"],tag="fix"))
            ops.append(valu(f"v_cvt_pk_bf16_f32 v{x}, v{t0}, v{t1}",[f"v{t0}",f"v{t1}"],[f"v{x}"],tag="fix"))
        ops.append(Op(f"ds_write_b128 v{vKF}, {rng('v',d,4)} offset:{off+1024*a}","W",rd=R("v",d,4)+[f"v{vKF}"],wr=[f"fixK{g}_{a}"],tag="fix",cost=P["wcost"]))
    return ops
def fix_v(g,earliest=None):
    ops=[]
    if g==4:
        ops.append(valu(f"v_add_u32 v{vVR}, 0x10000, v{vVR}",[f"v{vVR}"],[f"v{vVR}"],tag="fix"))
        ops.append(valu(f"v_add_u32 v{vVW}, 0x10000, v{vVW}",[f"v{vVW}"],[f"v{vVW}"],tag="fix"))
    off=(g%4)*16384
    for i in range(8):
        d=vST+16+2*i
        ops.append(Op(f"ds_read_b64 {rng('v',d,2)}, v{vVR} offset:{off+512*i}","D",rd=[f"v{vVR}",f"rawV{g}_{i//2}"]+ahead(f"V{g}"),wr=R("v",d,2),tag="fix",earliest=earliest))
    for q in range(4):
        t=vLS; e,par=q//2,q%2
        for tt in range(4):
            lo=vST+16+2*(2*tt)+e; hi=vST+16+2*(2*tt+1)+e
            ops.append(valu(f"v_perm_b32 v{t+tt}, v{hi}, v{lo}, s{sPH if par else sPL}",[f"v{hi}",f"v{lo}"],[f"v{t+tt}"],tag="fix"))
        ops.append(Op(f"ds_write_b128 v{vVW}, {rng('v',t,4)} offset:{off+512*q}","W",rd=R("v",t,4)+[f"v{vVW}"],wr=[f"fixV{g}_{q}"],tag="fix",cost=P["wcost"]))
    return ops
def barrier(rd,wr): return Op("s_barrier","B",rd=list(rd)+["bar"],wr=list(wr)+["bar"],tag="bar")

def main_prog():
    OFF=P["OFF"]
    units=[]
    for tau in range(12*6+OFF[3]):
        for t in range(4):
            if tau<12: p,k=0,tau
            else:
                x=tau-OFF[t]
                if x<12 or x>=72: continue
                p,k=x//12,x%12
            units.append(dict(t=t,p=p,tau=tau,s=tau%12,first=(k==0),last=(k==11)))
    if P.get("head"):
        n=len(P["head"]); idx={(u["t"],u["tau"]):u for u in units[:n]}
        units[:n]=[idx[x] for x in P["head"]]
    nU=len(units)
    for i,u in enumerate(units):
        u["i"]=i; u["newstep"]= (i==0 or units[i-1]["tau"]!=u["tau"])
        u["drain"]= u["p"]==0 and (u["t"],u["tau"]) in P.get("drain",())
        par=u["t"]%2
        u["pb"]= par if (i==0 or units[i-1]["pb"]!=par) else 1-par
        if i+1<nU and par==0 and units[i+1]["t"]==u["t"]+1: u["pb"]=0
    for i,u in enumerate(units):
        v=units[i+1] if i+1<nU else None
        if P.get("smf",1) and v and u["t"]%2==0 and v["t"]==u["t"]+1 and u["pb"]==0 and v["pb"]==1:
            u["paired"]=0; v["paired"]=1
    prog=[]
    qbuf={}
    pending=[(t,p) for p in range(1,6) for t in range(4)]
    def emit_qload(tp,buf,**kw):
        qbuf[tp]=buf
        ops=qloads(soff(sQo,4*tp[1]+tp[0]),buf[0],buf[1])
        for o in ops:
            for k,v in kw.items(): setattr(o,k,v)
        prog.extend(ops)
    def pre(ops):
        for o in ops: o.due=-1
        prog.extend(ops)
    def pubK(g):
        ops=[barrier([f"fixK{g}_{a}" for a in range(4)],[f"pubK{g}"])]
        if g<2:
            for s in (2*g,2*g+1):
                for j in range(8): ops.append(dsread("a",aKR+32*s+4*j,k_lds(s,j),"kr",[f"pubK{g}"]))
        return ops
    def pubV(g):
        rd=[f"fixV{g}_{a}" for a in range(4)]
        if g<2: rd+=R("a",aKR+64*g,64)
        if g==2: rd+=R("a",aKR,128)
        return [barrier(rd,[f"pubV{g}"])]
    def codepf():
        return [Op(f"global_load_dword v{vLS}, v{vLS+3}, s[52:53]","L",rd=[f"v{vLS+3}"],wr=[f"v{vLS}"],tag="pf")]
    for t in range(4): qbuf[(t,0)]=("a",aQ+16*t)
    xg=[]
    for blk in P["order"]: xg+= [(blk,g) for g in dma_ops(blk)]
    for _ in range(P["npre"]): pre(xg.pop(0)[1])
    if P.get('pf','first')=='mid': pre(codepf())
    if P.get("prefix"):
        work=[]
        for it in P["prefix"]:
            if it=="bar":
                work.append(barrier([f"fix{k}{g}_{a}" for k in "KV" for g in (0,1) for a in range(4)],["pubK0","pubK1","pubV0","pubV1"]))
                for s_ in range(4):
                    for j in range(8): work.append(dsread("a",aKR+32*s_+4*j,k_lds(s_,j),"kr",["pubK0"]))
            else: work+= (fix_k if it[1]=="k" else fix_v)(int(it[2]))
    else: work=fix_k(0)+pubK(0)
    k=0
    for o in work:
        need=[int(r[2:]) for r in o.rd if r.startswith("@x")]
        while need and 64-len(xg)<=max(need): pre(xg.pop(0)[1]); k=0
        pre([o]); k+=1
        if k>=P["chunk"] and 64-len(xg)<P.get("premax",64): pre(xg.pop(0)[1]); k=0
    def item_ops(item,e=None):
        g=int(item[-1])
        if g>=P["merge"]:
            if item[:2]=="fk": return fix_k(g,e)
            return fix_v(g,e)+[barrier([f"fixK{g}_{a}" for a in range(4)]+[f"fixV{g}_{a}" for a in range(4)]+(R("a",aKR,128) if g==2 else []),[f"pubK{g}",f"pubV{g}"])]
        if item[:2]=="fk": return fix_k(g,e)+pubK(g)
        if item[:2]=="fv": return fix_v(g,e)+pubV(g)
    xn=[0]
    def issue_upto(bi):
        while xg and 64-len(xg)<=bi:
            blk,ops=xg.pop(0)
            e=int(np.interp(64-len(xg)-1,P["xs"],P["xt"])); xn[0]+=1
            for o in ops:
                o.due=e+2
                if o.kind=="X": o.earliest=e
            prog.extend(ops)
    cons=[]
    for t in range(4): cons.append((P["order"].index(f"Q{t}"),("q",t)))
    for it in P["seq"]: cons.append((P["order"].index(it[0][1].upper()+it[0][2]),it))
    cons.sort(key=lambda x:x[0])
    for bi,it in cons:
        issue_upto(4*bi+3+P["ahead"])
        if it[0]=="q": prog.extend(q0_reads(it[1])); continue
        item,e=it[0],it[1]
        ops=item_ops(item,e)
        fx=[o for o in ops if o.tag in ("fix","bar")]
        for k,o in enumerate(fx): o.due=int(it[2]+(it[3]-it[2])*(k+1)/len(fx))
        prog.extend(ops)
    assert not xg
    emit_qload(pending.pop(0),("v",vQL))
    if P.get("otouch"):
        prog.append(Op(f"buffer_load_dword v{vL+11}, v{vA0}, s[{sO}:{sO+3}], s{sQB} offen nt","X",rd=[f"v{vA0}"],wr=[f"v{vL+11}"],tag="pf",earliest=P["otouch"],due=P["otouch"]+2))
    if P.get("pf2"):
        for k,e in enumerate(P["pf2"]):
            prog.append(Op(f"v_add_u32 v{vKD}, 0x8000, v{vKD}" if k else f"v_lshl_add_u32 v{vKD}, v{vA0}, 3, s55","V",rd=[f"v{vKD}",f"v{vA0}"],wr=[f"v{vKD}"],tag="pf",earliest=e-4,due=e))
            prog.append(Op(f"global_load_dword v{vVD}, v{vKD}, s[52:53]","L",rd=[f"v{vKD}"],wr=[f"v{vVD}"],tag="pf",earliest=e,due=e+2))
    def chain(u,kb,d,c):
        qb=qbuf[(u["t"],u["p"])]
        for ks in range(4):
            prog.append(mfma(d,kfrag(u["s"],4*kb+ks),(qb[0],qb[1]+4*ks), c if ks==0 else d, tag="qk"))
    def kloads(u):
        if u["newstep"] and u["s"]>=NRES and not u.get("kl"):
            u["kl"]=True
            for j in range(8): prog.append(dsread("a",aKF+4*j,k_lds(u["s"],j),"kf",[f"pubK{u['s']//2}"]))
    def hoist(u):
        c=vC+4*u["t"]; sb=vS+8*(u["i"]%2)
        if u["p"]>=1 and P.get("hs",1):
            chain(u,0,vHS,None)
            prog.extend(max_ops(vHS))
            for r in range(4): prog.append(valu(f"v_mov_b32 v{c+r}, v{vM0}",[f"v{vM0}"],[f"v{c+r}"],tag="max"))
            for r in range(4): prog.append(valu(f"v_add_f32 v{vHS+r}, v{vHS+r}, v{vM0}",[f"v{vHS+r}",f"v{vM0}"],[f"v{vHS+r}"],tag="max"))
            u["post"]=[]; u["lo"]=vHS
        else:
            chain(u,0,c,None)
            u["post"]=max_ops(c)
            for r in range(4): u["post"].append(valu(f"v_add_f32 v{sb+r}, v{c+r}, v{vM0}",[f"v{c+r}",f"v{vM0}"],[f"v{sb+r}"],tag="max"))
            for r in range(4): u["post"].append(valu(f"v_mov_b32 v{c+r}, v{vM0}",[f"v{vM0}"],[f"v{c+r}"],tag="max"))
        u["hoisted"]=True
    hoist(units[0])
    def do_qk(nx,n2):
        if nx: kloads(nx)
        n3=units[nx["i"]+2] if nx and nx["i"]+2<nU else None
        if P.get("hdist",2)>=2 and n3 and n3["first"] and n3["p"]>=1 and not n3.get("hoisted") and (n3["s"]<NRES or n3["tau"]==nx["tau"]) \
           and nx["t"]!=n3["t"] and n2["t"]!=n3["t"] and (n3["t"],n3["p"]) not in P.get("hnear",()):
            hoist(n3)
        if n2 and n2["first"] and not n2.get("hoisted") and not n2["drain"]:
            assert n2["s"]<NRES or n2["tau"]==nx["tau"], n2
            hoist(n2)
        if nx:
            c=vC+4*nx["t"]; sb=vS+8*(nx["i"]%2)
            if nx["first"]:
                if not nx.get("hoisted"): hoist(nx)
                prog.extend(nx["post"])
                chain(nx,1,sb+4,c)
            else:
                chain(nx,0,sb,c); chain(nx,1,sb+4,c)
            if nx["last"] and pending:
                emit_qload(pending.pop(0),qbuf[(nx["t"],nx["p"])])
    defer=[]; ofree=[vO,vO+32,vO+64,vO+96,vST]; obuf={}
    def do_pv(i):
        if i<0: return
        u=units[i]; t=u["t"]; pb=vP+4*u["pb"]
        if u["newstep"]:
            for b in range(8): prog.append(dsread("a",aVF+4*b,v_lds(u["s"],b),"vf",[f"pubV{u['s']//2}"]))
        if "paired" not in u: prog.append(lsum_dense(t,pb))
        elif u["paired"]==1:
            prog.append(lsum_pair(t//2))
            prog.extend(defer); defer.clear()
        if u["first"]: obuf[t]=ofree.pop(0)
        for b in range(8):
            o=obuf[t]+4*b
            prog.append(mfma(o,("v",pb),("a",aVF+4*b),None if u["first"] else o,tag="pv"))
        if u["last"]:
            idx=4*u["p"]+t
            G.P_X[0]=vLS+t
            e0,e1=epilogue(obuf[t], t, soff(sOo,idx), idx)
            if u["p"]==5 and t<3:
                cm=sum(1 for o in prog if o.kind=="M"); sp=P["endsp"][t]; k=0
                for o in e1:
                    if o.kind=="T": k+=1; o.due=cm+P["endoff"]+k*sp
            dst = defer if u.get("paired")==0 else prog
            dst.extend(e0); dst.extend(e1)
            ofree.append(obuf[t])
    for i in range(-1,nU):
        nx=units[i+1] if i+1<nU else None
        n2=units[i+2] if i+2<nU else None
        if nx and nx["drain"]:
            do_pv(i); do_qk(nx,n2)
        else:
            do_qk(nx,n2); do_pv(i)
        if nx:
            prog.extend(sm_ops(vS+8*(nx["i"]%2), vP+4*nx["pb"], lo=nx.get("lo")))
    return prog

def setup_text():
    REMAP=""" s_and_b32 s3, s2, 7
 s_lshl_b32 s3, s3, 5
 s_lshr_b32 s4, s2, 3
 s_or_b32 s3, s3, s4
""" if P.get("remap",1) else " s_mov_b32 s3, s2\n"
    PF=f" global_load_dword v{vM1}, v{vM0}, s[52:53]\n" if P.get("pf","first")=="first" else ""
    global LATE_SETUP
    LATE_SETUP=f"""v_and_b32 v5, 3, v3
v_lshrrev_b32 v6, 2, v3
v_lshl_add_u32 v5, v5, 2, v6
v_lshlrev_b32 v5, 8, v5
v_lshl_add_u32 v{vQO}, v4, 4, v5
v_lshrrev_b32 v5, 3, v3
v_lshlrev_b32 v5, 12, v5
v_lshl_add_u32 v5, v4, 7, v5
v_lshl_add_u32 v{vB0}, v7, 4, v5
v_add_u32 v{vB1}, 0x10000, v{vB0}
v_add_u32 v{vB2}, 0x20000, v{vB0}
v_lshlrev_b32 v9, 12, v2
v_add_u32 v{vKF}, v9, v{vA0}
v_add_u32 v{vKF}, 0x10000, v{vKF}
v_lshl_add_u32 v{vVR}, v1, 3, v9
v_and_b32 v5, 1, v1
v_lshl_add_u32 v5, v5, 11, v9
v_lshl_add_u32 v5, v4, 7, v5
v_lshrrev_b32 v6, 1, v3
v_lshl_add_u32 v{vVW}, v6, 4, v5
v_lshrrev_b32 v5, 3, v3
v_lshl_add_u32 v5, v5, 11, v9
v_lshl_add_u32 v5, v4, 7, v5
v_lshl_add_u32 v{vQR}, v7, 4, v5
v_add_u32 v{vQR2}, 0x18000, v{vQR}
v_and_b32 v5, 3, v1
v_lshl_add_u32 v5, v4, 2, v5
v_lshlrev_b32 v{G.vBP}, 2, v5
v_bfe_u32 v5, v1, 1, {3 if G.BPERM[0] else 1}
v_lshrrev_b32 v6, 5, v1
v_cmp_eq_u32 vcc, v5, v6
v_mov_b32 v5, 0x3f803f80
v_and_b32 v6, {15 if G.BPERM[0] else 3}, v1
v_cndmask_b32 v{vSPA}, 0, v5, vcc
v_cndmask_b32 v{vSPA+1}, 0, v5, vcc
v_cndmask_b32 v{vSPA+2}, 0, v5, vcc
v_cndmask_b32 v{vSPA+3}, 0, v5, vcc
v_cmp_eq_u32 vcc, 0, v6
v_and_b32 v6, 1, v1
v_mul_u32_u24 v6, 0xaaaa, v6
v_cndmask_b32 v{vSEL}, 0, v5, vcc
v_cndmask_b32 v{vSEL+1}, 0, v5, vcc
v_cndmask_b32 v{vSEL+2}, 0, v5, vcc
v_cndmask_b32 v{vSEL+3}, 0, v5, vcc
v_or_b32 v{vIDX}, 0x4444, v6
"""+"".join(f"v_mov_b32 v{vL+k}, 0\n" for k in range(10))+f"""s_mov_b32 s{sC}, {CSCALE:#x}
s_mov_b32 s{sTH}, {THRESH:#x}
s_mov_b32 s{sFL}, 0
s_mov_b32 s{sPL}, 0x05040100
s_mov_b32 s{sPH}, 0x07060302
s_mov_b32 s{sO}, s50
s_mov_b32 s{sO+1}, s51
s_mov_b32 s{sO+2}, 100663296
s_mov_b32 s{sO+3}, 0x20000"""
    return f"""
 s_cmp_ge_u32 s2, 256
 s_cbranch_scc1 L_end
 s_load_dwordx4 s[44:47], s[0:1], 0
 s_load_dwordx4 s[48:51], s[0:1], 16
{REMAP} s_getpc_b64 s[52:53]
 v_and_b32 v1, 63, v0
 v_lshrrev_b32 v2, 6, v0
 v_lshlrev_b32 v{vA0}, 4, v1
 v_readfirstlane_b32 s{sW}, v2
 s_lshr_b32 s54, s2, 3
 s_lshl_b32 s54, s54, 2
 s_add_u32 s54, s54, s{sW}
 s_mul_i32 s55, s54, 5042
 s_lshr_b32 s55, s55, 16
 s_mul_i32 s55, s55, 13
 s_sub_u32 s54, s54, s55
 s_lshl_b32 s54, s54, 13
 v_lshl_add_u32 v{vM0}, v1, 7, s54
{PF} v_and_b32 v7, 7, v1
 v_lshrrev_b32 v8, 3, v1
 v_lshlrev_b32 v5, 8, v7
 v_lshl_add_u32 v{vKD}, v8, 4, v5
 s_mul_i32 s{sKV}, s3, 98304
 s_lshr_b32 s{sTmp}, s{sW}, 1
 s_lshl_b32 s{sTmp}, s{sTmp}, 13
 s_add_u32 s{sKV}, s{sKV}, s{sTmp}
 s_and_b32 s{sTmp}, s{sW}, 1
 s_lshl_b32 s{sKb}, s{sTmp}, 11
 s_add_u32 s{sKb}, s{sKb}, s{sKV}
 s_lshl_b32 s{sVb}, s{sTmp}, 7
 s_add_u32 s{sVb}, s{sVb}, s{sKV}
 s_lshl_b32 s{sLw}, s{sW}, 12
 s_mul_i32 s{sQB}, s3, 393216
 s_mul_i32 s{sTmp}, s{sW}, {98304 if G.TSTRIDE[0]==4096 else 4096}
 s_add_u32 s{sQB}, s{sQB}, s{sTmp}
 v_and_b32 v5, 3, v8
 v_lshrrev_b32 v6, 5, v1
 v_lshl_add_u32 v5, v5, 2, v6
 v_lshlrev_b32 v5, 8, v5
 v_lshl_add_u32 v{vVD}, v7, 4, v5
 v_and_b32 v5, 3, v7
 v_lshrrev_b32 v6, 2, v7
 v_lshl_add_u32 v5, v5, 2, v6
 v_lshlrev_b32 v5, 8, v5
 v_lshl_add_u32 v{vQD}, v8, 4, v5
 v_and_b32 v3, 15, v1
 v_lshrrev_b32 v4, 4, v1
 s_mov_b32 s{sQ+2}, 100663296
 s_mov_b32 s{sQ+3}, 0x20000
 s_mov_b32 s{sK+2}, 25165824
 s_mov_b32 s{sK+3}, 0x20000
 s_mov_b32 s{sV+2}, 25165824
 s_mov_b32 s{sV+3}, 0x20000
 s_waitcnt lgkmcnt(0)
 s_mov_b32 s{sK}, s46
 s_mov_b32 s{sK+1}, s47
 s_mov_b32 s{sQ}, s44
 s_mov_b32 s{sQ+1}, s45
 s_mov_b32 s{sV}, s48
 s_mov_b32 s{sV+1}, s49
"""
import post, re
def hook(mt):
    setup_text()
    out=[]; nx=0
    for x in mt:
        out.append(x)
        if x.endswith(" lds"):
            nx+=1
            if nx==P.get("late_at",8): out+=LATE_SETUP.split("\n")
    mt=out
    if P.get("shift"):
        n,at=P["shift"]; out=[]; c=0
        for x in mt:
            out.append(x)
            if x.startswith("v_mfma") or x.startswith("v_smfmac"):
                c+=1
                if c==at: out+=["s_nop 0"]*n
        mt=out
    W=P.get("warm")
    if not W: return mt
    out=[]; nx=0; nm=0; todo=list(enumerate(W)); scc_live=False
    for x in mt:
        out.append(x)
        if x.endswith(" lds"): nx+=1
        if x.startswith("v_mfma") or x.startswith("v_smfmac"): nm+=1
        if todo:
            r,(kind,n,pages)=todo[0]
            if x.startswith("s_cmp"): scc_live=True
            if x.startswith("s_cselect"): scc_live=False
            if (kind=="x" and nx==n) or (kind=="m" and nm>=n and not scc_live and x.startswith("v_mfma")):
                out+=post.warm_text(r,sW); todo.pop(0)
    return out
def postf(path):
    W=P.get("warm")
    if not W: return
    s=open(path).read()
    tmp=re.sub(r"@E(\d+)_\d@",lambda m:f"L_wb{m.group(1)}",s)
    open(path,"w").write(tmp)
    sz=post.sizes(path)
    open(path,"w").write(s)
    post.sizes_orig=post.sizes
    post.sizes=lambda p: sz
    n=post.add_stubs(path,G.NAME,sW,nlines=P.get("nlines",1),rounds=[(None,w[2]) for w in W])
    post.sizes=post.sizes_orig
G.HOOK=hook; G.POST=postf
G.main_prog=main_prog; G.setup_text=setup_text; G.staging_v1=lambda: []
if __name__=="__main__":
    out=sys.argv[1] if len(sys.argv)>1 else "k2.s"
    if len(sys.argv)>2 and sys.argv[2]=="stamp": G.STAMP=True
    if len(sys.argv)>3: G.STAMP_AT=[int(x) for x in sys.argv[3].split(",")]
    G.gen(out)
    from build import build
    print(build(out))
```

```python
import sys
import numpy as np
import gen as G
from gen import *
LDNT=" nt"
vB0=248; vB1=249; vB2=250
vKF=251
vKD=252; vVD=253; vVR=254; vVW=255
vHS=252
sKb=36; sVb=37; sLw=38; sD0=39; sD1=40; sD2=41; sD3=42
def lds_addr(off): return (vB0,vB1,vB2)[off>>16], off&0xffff
G.lds_addr=lds_addr
def k_lds(s,j): return 65536+s*8192+j*512
def v_lds(s,b): return s*8192+b*512
G.k_lds=k_lds; G.v_lds=v_lds

P=dict(order=["K0","Q0","V0","Q1","K1","V1","Q2","Q3","K2","V2","K3","V3","K4","V4","K5","V5"],
       head=[(0,0),(0,1),(1,0),(1,1),(0,2),(1,2),(0,3),(1,3),(2,0),(3,0),(2,1),(3,1),(2,2),(3,2),(2,3),(3,3)],
       drain=[(1,0),(2,0)],
       npre=10, ahead=6, chunk=30, xs=[12,28,63], xt=[0,50,50+35*11], early_blocks=8,
       seq=[("fv0",0,8,10),("fk1",30,40,50),("fv1",50,60,66),("fk2",0,170,225),("fv2",0,215,250),
            ("fk3",0,262,355),("fv3",0,345,386),("fk4",0,398,491),("fv4",0,481,522),("fk5",0,534,627),("fv5",0,617,658)], merge=2,
       warm=[('x',6,list(range(1,13))),('m',2000,list(range(13,30)))], hnear=[(1,1)], endsp=[30,21,9], endoff=12, rev=1, dma_lat=45, OFF=[0,3,6,9], wcost=20)
QREG={0:65536+5*16384,1:65536+4*16384,2:3*16384,3:65536+3*16384}
QHOST={"K5":0,"K4":1,"V3":2,"K3":3}
vQD=vO+120; vQR=vO+121; vQR2=vO+122

def dma_ops(blk):
    kind,g=blk[0],int(blk[1]); bi=P["order"].index(blk)
    groups=[]
    extra=[]
    if kind=="V" and g>=4: extra+=(["pubV2"] if P.get("prefix") else [f"pubV{g-4}"])
    if blk in QHOST: extra+=R("a",aQ+16*QHOST[blk],16)
    for a in range(4):
        ops=[]
        if kind=="Q":
            srd,vo,reg=sQ,vQD,QREG[g]; imm=(a//2)*512+(a%2)*128; so=sQo
            if a==0: ops.append(soff(sQo,g))
        else:
            sb = sKb if kind=="K" else sVb
            s0,s1 = (sD0,sD1) if kind=="K" else (sD2,sD3)
            srd = sK if kind=="K" else sV
            vo = vKD if kind=="K" else vVD
            reg = (65536 if kind=="K" else 0)+g*16384
            imm=(a%2)*(128 if kind=="K" else 512); so=(s0,s1)[a//2]
            if a%2==0: ops.append(Op(f"s_add_u32 s{so}, s{sb}, {g*16384+(a//2)*4096}","S",rd=[f"s{sb}"],wr=[f"s{so}","scc"],tag="dma"))
        ops.append(Op(f"s_add_u32 m0, s{sLw}, {reg+a*1024-imm}","S",rd=[f"s{sLw}"],wr=["m0","scc"],tag="dma"))
        ops.append(Op(f"buffer_load_dwordx4 v{vo}, s[{srd}:{srd+3}], s{so} offen offset:{imm}{LDNT} lds","X",
                      rd=[f"v{vo}","m0",f"s{so}"]+extra,wr=[f"raw{blk}_{a}",f"@x{4*bi+a}"],tag="dma",lat=(0 if bi<P["early_blocks"] else P["dma_lat"])))
        groups.append(ops)
    return groups
def ahead(blk):
    if P['order'].index(blk)>=P["early_blocks"]: return []
    return [f"@x{min(4*P['order'].index(blk)+3+P['ahead'],63)}"]
def q0_reads(t):
    ops=[]
    reg=QREG[t]; v=vQR if reg<65536 else vQR2
    off=reg if reg<65536 else reg-98304
    for ks in range(4):
        d=aQ+16*t+4*ks
        ops.append(Op(f"ds_read_b128 {rng('a',d,4)}, v{v} offset:{off+512*ks}","D",rd=[f"v{v}",f"rawQ{t}_{ks//2}",f"rawQ{t}_{2+ks//2}"]+ahead(f"Q{t}"),wr=R("a",d,4),tag="q0"))
    return ops

def fix_k(g,earliest=None):
    ops=[]
    if g==4: ops.append(valu(f"v_add_u32 v{vKF}, 0x10000, v{vKF}",[f"v{vKF}"],[f"v{vKF}"],tag="fix"))
    off=(g%4)*16384
    for a in range(4):
        d=vST+4*a
        ops.append(Op(f"ds_read_b128 {rng('v',d,4)}, v{vKF} offset:{off+1024*a}","D",rd=[f"v{vKF}",f"rawK{g}_{a}"]+ahead(f"K{g}"),wr=R("v",d,4),tag="fix",earliest=earliest))
    for a in range(4):
        d=vST+4*a
        for e in range(4):
            x=d+e; t0=vT+2*(e%2); t1=t0+1
            ops.append(valu(f"v_lshlrev_b32 v{t0}, 16, v{x}",[f"v{x}"],[f"v{t0}"],tag="fix"))
            ops.append(valu(f"v_and_b32 v{t1}, 0xffff0000, v{x}",[f"v{x}"],[f"v{t1}"],tag="fix"))
            ops.append(valu(f"v_mul_f32 v{t0}, s{sC}, v{t0}",[f"v{t0}"],[f"v{t0}"],tag="fix"))
            ops.append(valu(f"v_mul_f32 v{t1}, s{sC}, v{t1}",[f"v{t1}"],[f"v{t1}"],tag="fix"))
            ops.append(valu(f"v_cvt_pk_bf16_f32 v{x}, v{t0}, v{t1}",[f"v{t0}",f"v{t1}"],[f"v{x}"],tag="fix"))
        ops.append(Op(f"ds_write_b128 v{vKF}, {rng('v',d,4)} offset:{off+1024*a}","W",rd=R("v",d,4)+[f"v{vKF}"],wr=[f"fixK{g}_{a}"],tag="fix",cost=P["wcost"]))
    return ops
def fix_v(g,earliest=None):
    ops=[]
    if g==4:
        ops.append(valu(f"v_add_u32 v{vVR}, 0x10000, v{vVR}",[f"v{vVR}"],[f"v{vVR}"],tag="fix"))
        ops.append(valu(f"v_add_u32 v{vVW}, 0x10000, v{vVW}",[f"v{vVW}"],[f"v{vVW}"],tag="fix"))
    off=(g%4)*16384
    for i in range(8):
        d=vST+16+2*i
        ops.append(Op(f"ds_read_b64 {rng('v',d,2)}, v{vVR} offset:{off+512*i}","D",rd=[f"v{vVR}",f"rawV{g}_{i//2}"]+ahead(f"V{g}"),wr=R("v",d,2),tag="fix",earliest=earliest))
    for q in range(4):
        t=vLS; e,par=q//2,q%2
        for tt in range(4):
            lo=vST+16+2*(2*tt)+e; hi=vST+16+2*(2*tt+1)+e
            ops.append(valu(f"v_perm_b32 v{t+tt}, v{hi}, v{lo}, s{sPH if par else sPL}",[f"v{hi}",f"v{lo}"],[f"v{t+tt}"],tag="fix"))
        ops.append(Op(f"ds_write_b128 v{vVW}, {rng('v',t,4)} offset:{off+512*q}","W",rd=R("v",t,4)+[f"v{vVW}"],wr=[f"fixV{g}_{q}"],tag="fix",cost=P["wcost"]))
    return ops
def barrier(rd,wr): return Op("s_barrier","B",rd=list(rd)+["bar"],wr=list(wr)+["bar"],tag="bar")

def main_prog():
    OFF=P["OFF"]
    units=[]
    for tau in range(12*6+OFF[3]):
        for t in range(4):
            if tau<12: p,k=0,tau
            else:
                x=tau-OFF[t]
                if x<12 or x>=72: continue
                p,k=x//12,x%12
            units.append(dict(t=t,p=p,tau=tau,s=tau%12,first=(k==0),last=(k==11)))
    if P.get("head"):
        n=len(P["head"]); idx={(u["t"],u["tau"]):u for u in units[:n]}
        units[:n]=[idx[x] for x in P["head"]]
    nU=len(units)
    for i,u in enumerate(units):
        u["i"]=i; u["newstep"]= (i==0 or units[i-1]["tau"]!=u["tau"])
        u["drain"]= u["p"]==0 and (u["t"],u["tau"]) in P.get("drain",())
        par=u["t"]%2
        u["pb"]= par if (i==0 or units[i-1]["pb"]!=par) else 1-par
        if i+1<nU and par==0 and units[i+1]["t"]==u["t"]+1: u["pb"]=0
    for i,u in enumerate(units):
        v=units[i+1] if i+1<nU else None
        if P.get("smf",1) and v and u["t"]%2==0 and v["t"]==u["t"]+1 and u["pb"]==0 and v["pb"]==1:
            u["paired"]=0; v["paired"]=1
    prog=[]
    qbuf={}
    pending=[(t,p) for p in range(1,6) for t in range(4)]
    def emit_qload(tp,buf,**kw):
        qbuf[tp]=buf
        ops=qloads(soff(sQo,4*tp[1]+tp[0]),buf[0],buf[1])
        for o in ops:
            for k,v in kw.items(): setattr(o,k,v)
        prog.extend(ops)
    def pre(ops):
        for o in ops: o.due=-1
        prog.extend(ops)
    def pubK(g):
        ops=[barrier([f"fixK{g}_{a}" for a in range(4)],[f"pubK{g}"])]
        if g<2:
            for s in (2*g,2*g+1):
                for j in range(8): ops.append(dsread("a",aKR+32*s+4*j,k_lds(s,j),"kr",[f"pubK{g}"]))
        return ops
    def pubV(g):
        rd=[f"fixV{g}_{a}" for a in range(4)]
        if g<2: rd+=R("a",aKR+64*g,64)
        if g==2: rd+=R("a",aKR,128)
        return [barrier(rd,[f"pubV{g}"])]
    def codepf():
        return [Op(f"global_load_dword v{vLS}, v{vLS+3}, s[52:53]","L",rd=[f"v{vLS+3}"],wr=[f"v{vLS}"],tag="pf")]
    for t in range(4): qbuf[(t,0)]=("a",aQ+16*t)
    xg=[]
    for blk in P["order"]: xg+= [(blk,g) for g in dma_ops(blk)]
    for _ in range(P["npre"]): pre(xg.pop(0)[1])
    if P.get('pf','first')=='mid': pre(codepf())
    if P.get("prefix"):
        work=[]
        for it in P["prefix"]:
            if it=="bar":
                work.append(barrier([f"fix{k}{g}_{a}" for k in "KV" for g in (0,1) for a in range(4)],["pubK0","pubK1","pubV0","pubV1"]))
                for s_ in range(4):
                    for j in range(8): work.append(dsread("a",aKR+32*s_+4*j,k_lds(s_,j),"kr",["pubK0"]))
            else: work+= (fix_k if it[1]=="k" else fix_v)(int(it[2]))
    else: work=fix_k(0)+pubK(0)
    k=0
    for o in work:
        need=[int(r[2:]) for r in o.rd if r.startswith("@x")]
        while need and 64-len(xg)<=max(need): pre(xg.pop(0)[1]); k=0
        pre([o]); k+=1
        if k>=P["chunk"] and 64-len(xg)<P.get("premax",64): pre(xg.pop(0)[1]); k=0
    def item_ops(item,e=None):
        g=int(item[-1])
        if g>=P["merge"]:
            if item[:2]=="fk": return fix_k(g,e)
            return fix_v(g,e)+[barrier([f"fixK{g}_{a}" for a in range(4)]+[f"fixV{g}_{a}" for a in range(4)]+(R("a",aKR,128) if g==2 else []),[f"pubK{g}",f"pubV{g}"])]
        if item[:2]=="fk": return fix_k(g,e)+pubK(g)
        if item[:2]=="fv": return fix_v(g,e)+pubV(g)
    xn=[0]
    def issue_upto(bi):
        while xg and 64-len(xg)<=bi:
            blk,ops=xg.pop(0)
            e=int(np.interp(64-len(xg)-1,P["xs"],P["xt"])); xn[0]+=1
            for o in ops:
                o.due=e+2
                if o.kind=="X": o.earliest=e
            prog.extend(ops)
    cons=[]
    for t in range(4): cons.append((P["order"].index(f"Q{t}"),("q",t)))
    for it in P["seq"]: cons.append((P["order"].index(it[0][1].upper()+it[0][2]),it))
    cons.sort(key=lambda x:x[0])
    for bi,it in cons:
        issue_upto(4*bi+3+P["ahead"])
        if it[0]=="q": prog.extend(q0_reads(it[1])); continue
        item,e=it[0],it[1]
        ops=item_ops(item,e)
        fx=[o for o in ops if o.tag in ("fix","bar")]
        for k,o in enumerate(fx): o.due=int(it[2]+(it[3]-it[2])*(k+1)/len(fx))
        prog.extend(ops)
    assert not xg
    emit_qload(pending.pop(0),("v",vQL))
    if P.get("otouch"):
        prog.append(Op(f"buffer_load_dword v{vL+11}, v{vA0}, s[{sO}:{sO+3}], s{sQB} offen nt","X",rd=[f"v{vA0}"],wr=[f"v{vL+11}"],tag="pf",earliest=P["otouch"],due=P["otouch"]+2))
    if P.get("pf2"):
        for k,e in enumerate(P["pf2"]):
            prog.append(Op(f"v_add_u32 v{vKD}, 0x8000, v{vKD}" if k else f"v_lshl_add_u32 v{vKD}, v{vA0}, 3, s55","V",rd=[f"v{vKD}",f"v{vA0}"],wr=[f"v{vKD}"],tag="pf",earliest=e-4,due=e))
            prog.append(Op(f"global_load_dword v{vVD}, v{vKD}, s[52:53]","L",rd=[f"v{vKD}"],wr=[f"v{vVD}"],tag="pf",earliest=e,due=e+2))
    def chain(u,kb,d,c):
        qb=qbuf[(u["t"],u["p"])]
        order=list(range(4))
        if P.get("rev") and kb==1: order.reverse()
        for n_,ks in enumerate(order):
            prog.append(mfma(d,kfrag(u["s"],4*kb+ks),(qb[0],qb[1]+4*ks), c if n_==0 else d, tag="qk"))
    def kloads(u):
        if u["newstep"] and u["s"]>=NRES and not u.get("kl"):
            u["kl"]=True
            for j in range(8): prog.append(dsread("a",aKF+4*j,k_lds(u["s"],j),"kf",[f"pubK{u['s']//2}"]))
    def hoist(u):
        c=vC+4*u["t"]; sb=vS+8*(u["i"]%2)
        if u["p"]>=1 and P.get("hs",1):
            chain(u,0,vHS,None)
            prog.extend(max_ops(vHS))
            for r in range(4): prog.append(valu(f"v_mov_b32 v{c+r}, v{vM0}",[f"v{vM0}"],[f"v{c+r}"],tag="max"))
            for r in range(4): prog.append(valu(f"v_add_f32 v{vHS+r}, v{vHS+r}, v{vM0}",[f"v{vHS+r}",f"v{vM0}"],[f"v{vHS+r}"],tag="max"))
            u["post"]=[]; u["lo"]=vHS
        else:
            chain(u,0,c,None)
            u["post"]=max_ops(c)
            for r in range(4): u["post"].append(valu(f"v_add_f32 v{sb+r}, v{c+r}, v{vM0}",[f"v{c+r}",f"v{vM0}"],[f"v{sb+r}"],tag="max"))
            for r in range(4): u["post"].append(valu(f"v_mov_b32 v{c+r}, v{vM0}",[f"v{vM0}"],[f"v{c+r}"],tag="max"))
        u["hoisted"]=True
    hoist(units[0])
    def do_qk(nx,n2):
        if nx: kloads(nx)
        n3=units[nx["i"]+2] if nx and nx["i"]+2<nU else None
        if P.get("hdist",2)>=2 and n3 and n3["first"] and n3["p"]>=1 and not n3.get("hoisted") and (n3["s"]<NRES or n3["tau"]==nx["tau"]) \
           and nx["t"]!=n3["t"] and n2["t"]!=n3["t"] and (n3["t"],n3["p"]) not in P.get("hnear",()):
            hoist(n3)
        if n2 and n2["first"] and not n2.get("hoisted") and not n2["drain"]:
            assert n2["s"]<NRES or n2["tau"]==nx["tau"], n2
            hoist(n2)
        if nx:
            c=vC+4*nx["t"]; sb=vS+8*(nx["i"]%2)
            if nx["first"]:
                if not nx.get("hoisted"): hoist(nx)
                prog.extend(nx["post"])
                chain(nx,1,sb+4,c)
            else:
                chain(nx,0,sb,c); chain(nx,1,sb+4,c)
            if nx["last"] and pending:
                emit_qload(pending.pop(0),qbuf[(nx["t"],nx["p"])])
    defer=[]; ofree=[vO,vO+32,vO+64,vO+96,vST]; obuf={}
    def do_pv(i):
        if i<0: return
        u=units[i]; t=u["t"]; pb=vP+4*u["pb"]
        if u["newstep"]:
            for b in range(8): prog.append(dsread("a",aVF+4*b,v_lds(u["s"],b),"vf",[f"pubV{u['s']//2}"]))
        if "paired" not in u: prog.append(lsum_dense(t,pb))
        elif u["paired"]==1:
            prog.append(lsum_pair(t//2))
            prog.extend(defer); defer.clear()
        if u["first"]: obuf[t]=ofree.pop(0)
        for b in range(8):
            o=obuf[t]+4*b
            prog.append(mfma(o,("v",pb),("a",aVF+4*b),None if u["first"] else o,tag="pv"))
        if u["last"]:
            idx=4*u["p"]+t
            G.P_X[0]=vLS+t
            e0,e1=epilogue(obuf[t], t, soff(sOo,idx), idx)
            if u["p"]==5 and t<3:
                cm=sum(1 for o in prog if o.kind=="M"); sp=P["endsp"][t]; k=0
                for o in e1:
                    if o.kind=="T": k+=1; o.due=cm+P["endoff"]+k*sp
            dst = defer if u.get("paired")==0 else prog
            dst.extend(e0); dst.extend(e1)
            ofree.append(obuf[t])
    for i in range(-1,nU):
        nx=units[i+1] if i+1<nU else None
        n2=units[i+2] if i+2<nU else None
        if nx and nx["drain"]:
            do_pv(i); do_qk(nx,n2)
        else:
            do_qk(nx,n2); do_pv(i)
        if nx:
            prog.extend(sm_ops(vS+8*(nx["i"]%2), vP+4*nx["pb"], lo=nx.get("lo")))
    return prog

def setup_text():
    REMAP=""" s_and_b32 s3, s2, 7
 s_lshl_b32 s3, s3, 5
 s_lshr_b32 s4, s2, 3
 s_or_b32 s3, s3, s4
""" if P.get("remap",1) else " s_mov_b32 s3, s2\n"
    PF=f" global_load_dword v{vM1}, v{vM0}, s[52:53]\n" if P.get("pf","first")=="first" else ""
    global LATE_SETUP
    LATE_SETUP=f"""v_and_b32 v5, 3, v3
v_lshrrev_b32 v6, 2, v3
v_lshl_add_u32 v5, v5, 2, v6
v_lshlrev_b32 v5, 8, v5
v_lshl_add_u32 v{vQO}, v4, 4, v5
v_lshrrev_b32 v5, 3, v3
v_lshlrev_b32 v5, 12, v5
v_lshl_add_u32 v5, v4, 7, v5
v_lshl_add_u32 v{vB0}, v7, 4, v5
v_add_u32 v{vB1}, 0x10000, v{vB0}
v_add_u32 v{vB2}, 0x20000, v{vB0}
v_lshlrev_b32 v9, 12, v2
v_add_u32 v{vKF}, v9, v{vA0}
v_add_u32 v{vKF}, 0x10000, v{vKF}
v_lshl_add_u32 v{vVR}, v1, 3, v9
v_and_b32 v5, 1, v1
v_lshl_add_u32 v5, v5, 11, v9
v_lshl_add_u32 v5, v4, 7, v5
v_lshrrev_b32 v6, 1, v3
v_lshl_add_u32 v{vVW}, v6, 4, v5
v_lshrrev_b32 v5, 3, v3
v_lshl_add_u32 v5, v5, 11, v9
v_lshl_add_u32 v5, v4, 7, v5
v_lshl_add_u32 v{vQR}, v7, 4, v5
v_add_u32 v{vQR2}, 0x18000, v{vQR}
v_bfe_u32 v5, v1, 1, {3 if G.BPERM[0] else 1}
v_lshrrev_b32 v6, 5, v1
v_cmp_eq_u32 vcc, v5, v6
v_mov_b32 v5, 0x3f803f80
v_and_b32 v6, {15 if G.BPERM[0] else 3}, v1
v_cndmask_b32 v{vSPA}, 0, v5, vcc
v_cndmask_b32 v{vSPA+1}, 0, v5, vcc
v_cndmask_b32 v{vSPA+2}, 0, v5, vcc
v_cndmask_b32 v{vSPA+3}, 0, v5, vcc
v_cmp_eq_u32 vcc, 0, v6
v_and_b32 v6, 1, v1
v_mul_u32_u24 v6, 0xaaaa, v6
v_cndmask_b32 v{vSEL}, 0, v5, vcc
v_cndmask_b32 v{vSEL+1}, 0, v5, vcc
v_cndmask_b32 v{vSEL+2}, 0, v5, vcc
v_cndmask_b32 v{vSEL+3}, 0, v5, vcc
v_or_b32 v{vIDX}, 0x4444, v6
"""+"".join(f"v_mov_b32 v{vL+k}, 0\n" for k in range(10))+f"""s_mov_b32 s{sC}, {CSCALE:#x}
s_mov_b32 s{sTH}, {THRESH:#x}
s_mov_b32 s{sFL}, 0
s_mov_b32 s{sPL}, 0x05040100
s_mov_b32 s{sPH}, 0x07060302
s_mov_b32 s{sO}, s50
s_mov_b32 s{sO+1}, s51
s_mov_b32 s{sO+2}, 100663296
s_mov_b32 s{sO+3}, 0x20000"""
    return f"""
 s_cmp_ge_u32 s2, 256
 s_cbranch_scc1 L_end
 s_load_dwordx4 s[44:47], s[0:1], 0
 s_load_dwordx4 s[48:51], s[0:1], 16
{REMAP} s_getpc_b64 s[52:53]
 v_and_b32 v1, 63, v0
 v_lshrrev_b32 v2, 6, v0
 v_lshlrev_b32 v{vA0}, 4, v1
 v_readfirstlane_b32 s{sW}, v2
 s_lshr_b32 s54, s2, 3
 s_lshl_b32 s54, s54, 2
 s_add_u32 s54, s54, s{sW}
 s_mul_i32 s55, s54, 5042
 s_lshr_b32 s55, s55, 16
 s_mul_i32 s55, s55, 13
 s_sub_u32 s54, s54, s55
 s_lshl_b32 s54, s54, 13
 v_lshl_add_u32 v{vM0}, v1, 7, s54
{PF} v_and_b32 v7, 7, v1
 v_lshrrev_b32 v8, 3, v1
 v_lshlrev_b32 v5, 8, v7
 v_lshl_add_u32 v{vKD}, v8, 4, v5
 s_mul_i32 s{sKV}, s3, 98304
 s_lshr_b32 s{sTmp}, s{sW}, 1
 s_lshl_b32 s{sTmp}, s{sTmp}, 13
 s_add_u32 s{sKV}, s{sKV}, s{sTmp}
 s_and_b32 s{sTmp}, s{sW}, 1
 s_lshl_b32 s{sKb}, s{sTmp}, 11
 s_add_u32 s{sKb}, s{sKb}, s{sKV}
 s_lshl_b32 s{sVb}, s{sTmp}, 7
 s_add_u32 s{sVb}, s{sVb}, s{sKV}
 s_lshl_b32 s{sLw}, s{sW}, 12
 s_mul_i32 s{sQB}, s3, 393216
 s_mul_i32 s{sTmp}, s{sW}, {98304 if G.TSTRIDE[0]==4096 else 4096}
 s_add_u32 s{sQB}, s{sQB}, s{sTmp}
 v_and_b32 v5, 3, v8
 v_lshrrev_b32 v6, 5, v1
 v_lshl_add_u32 v5, v5, 2, v6
 v_lshlrev_b32 v5, 8, v5
 v_lshl_add_u32 v{vVD}, v7, 4, v5
 v_and_b32 v5, 3, v7
 v_lshrrev_b32 v6, 2, v7
 v_lshl_add_u32 v5, v5, 2, v6
 v_lshlrev_b32 v5, 8, v5
 v_lshl_add_u32 v{vQD}, v8, 4, v5
 v_and_b32 v3, 15, v1
 v_lshrrev_b32 v4, 4, v1
 s_mov_b32 s{sQ+2}, 100663296
 s_mov_b32 s{sQ+3}, 0x20000
 s_mov_b32 s{sK+2}, 25165824
 s_mov_b32 s{sK+3}, 0x20000
 s_mov_b32 s{sV+2}, 25165824
 s_mov_b32 s{sV+3}, 0x20000
 s_waitcnt lgkmcnt(0)
 s_mov_b32 s{sK}, s46
 s_mov_b32 s{sK+1}, s47
 s_mov_b32 s{sQ}, s44
 s_mov_b32 s{sQ+1}, s45
 s_mov_b32 s{sV}, s48
 s_mov_b32 s{sV+1}, s49
"""
import post, re
def hook(mt):
    setup_text()
    out=[]; nx=0
    for x in mt:
        out.append(x)
        if x.endswith(" lds"):
            nx+=1
            if nx==P.get("late_at",8): out+=LATE_SETUP.split("\n")
    mt=out
    if P.get("shift"):
        n,at=P["shift"]; out=[]; c=0
        for x in mt:
            out.append(x)
            if x.startswith("v_mfma") or x.startswith("v_smfmac"):
                c+=1
                if c==at: out+=["s_nop 0"]*n
        mt=out
    W=P.get("warm")
    if not W: return mt
    out=[]; nx=0; nm=0; todo=list(enumerate(W)); scc_live=False
    for x in mt:
        out.append(x)
        if x.endswith(" lds"): nx+=1
        if x.startswith("v_mfma") or x.startswith("v_smfmac"): nm+=1
        if todo:
            r,(kind,n,pages)=todo[0]
            if x.startswith("s_cmp"): scc_live=True
            if x.startswith("s_cselect"): scc_live=False
            if (kind=="x" and nx==n) or (kind=="m" and nm>=n and not scc_live and x.startswith("v_mfma")):
                out+=post.warm_text(r,sW); todo.pop(0)
    return out
def postf(path):
    W=P.get("warm")
    if not W: return
    s=open(path).read()
    tmp=re.sub(r"@E(\d+)_\d@",lambda m:f"L_wb{m.group(1)}",s)
    open(path,"w").write(tmp)
    sz=post.sizes(path)
    open(path,"w").write(s)
    post.sizes_orig=post.sizes
    post.sizes=lambda p: sz
    n=post.add_stubs(path,G.NAME,sW,nlines=P.get("nlines",1),rounds=[(None,w[2]) for w in W])
    post.sizes=post.sizes_orig
G.HOOK=hook; G.POST=postf
G.main_prog=main_prog; G.setup_text=setup_text; G.staging_v1=lambda: []
if __name__=="__main__":
    out=sys.argv[1] if len(sys.argv)>1 else "k2.s"
    if len(sys.argv)>2 and sys.argv[2]=="stamp": G.STAMP=True
    if len(sys.argv)>3: G.STAMP_AT=[int(x) for x in sys.argv[3].split(",")]
    G.gen(out)
    from build import build
    print(build(out))
```

```python
import gen as G, gen2, build
def make(name, at):
    G.NAME=f"{name}_kernel"; p=f"work/{name}.s"
    def hk(mt):
        out=["s_memtime s[64:65]","s_memrealtime s[66:67]"];c=0;k=1
        for x in gen2.hook(mt):
            out.append(x)
            if x.startswith("v_mfma") or x.startswith("v_smfmac"):
                c+=1
                if c in at:
                    out.append(f"s_memtime s[{64+4*k}:{65+4*k}]"); out.append(f"s_memrealtime s[{66+4*k}:{67+4*k}]"); k+=1
        out+=["s_waitcnt vmcnt(0) lgkmcnt(0)","s_load_dwordx2 s[56:57], s[0:1], 40","s_waitcnt lgkmcnt(0)","s_mov_b32 s58, 402653184","s_mov_b32 s59, 0x20000",
               "s_lshl_b32 s60, s2, 2",f"s_add_u32 s60, s60, s{G.sW}","s_lshl_b32 s60, s60, 7","v_mov_b32 v1, s60"]
        for j in range(2*k): out+=[f"v_mov_b32 v2, s{64+2*j}",f"buffer_store_dword v2, v1, s[56:59], 0 offen offset:{4*j}"]
        return out
    G.HOOK=hk; G.gen(p); G.HOOK=gen2.hook
    s=open(p).read().replace("; @launch grid=(256,1,1)",f"; @launch kernel={G.NAME} grid=(256,1,1)")
    open(p,"w").write(s); build.build(p)
    return f"work/{name}.co {G.NAME} 256 256 163840 5 1 0 1"
jobs=[make("g0",[1,40,80,120,160,200,240,280]),make("g1",[280,360,440,520,600,680,760,840]),make("g2",[840,1000,1160,1320,1480,1640,1800,1960]),make("g3",[1960,2360,2760,3160,3560,3960,4360,4760])]
open("g.jobs","w").write("\n".join(jobs)+"\n")
```
